```python
import torch

def _softmax(x, axis=-1):
    return torch.softmax(x, dim=axis)

def _gelu(x):
    return torch.nn.functional.gelu(x, approximate='tanh')

def _silu(x):
    return torch.nn.functional.silu(x)

def _sigmoid(x):
    return torch.sigmoid(x)

def _layernorm(x, axis=-1, eps=1e-05):
    m = x.mean(dim=axis, keepdim=True)
    v = x.var(dim=axis, keepdim=True, unbiased=False)
    return (x - m) / torch.sqrt(v + eps)

def _scatter_add(tgt, idx, src, axis=0):
    return tgt.clone().index_add_(axis, idx, src)

def _segment_sum(src, seg, n):
    out = torch.zeros((n,) + src.shape[1:], dtype=src.dtype)
    return out.index_add_(0, seg, src)

def _pad(x, pw):
    flat = tuple((v for pair in reversed(pw) for v in pair))
    return torch.nn.functional.pad(x, flat)
kernel_name = 'standalone__autoregressive_conv_wavenet__speech'

def setup_inputs():

    _w = lambda a: (lambda t: t.to(torch.bfloat16) if t.is_floating_point() else t)(torch.as_tensor(a))
    B, T, D, K = (2, 1000, 144, 31)
    return {'x': _w((lambda *s: torch.randn(*s, dtype=torch.bfloat16) * 0.1)(B, T, D)), 'w': _w((lambda *s: torch.randn(*s, dtype=torch.bfloat16) * 0.1)(K, D, 2 * D)), 'w_o': _w((lambda *s: torch.randn(*s, dtype=torch.bfloat16) * 0.05)(D, D))}

def reference(x, w, w_o):
    B, T, D = x.shape
    K = w.shape[0]
    dil = 2
    pad = (K - 1) * dil
    xp = _pad(x, ((0, 0), (pad, 0), (0, 0)))
    h = torch.einsum('btc,cd->btd', xp[:, pad:pad + T, :], w[0])
    for i in range(1, K):
        off = pad - i * dil
        h = h + torch.einsum('btc,cd->btd', xp[:, off:off + T, :], w[i])
    f = h[..., :D].clone()
    g = h[..., D:].clone()
    z = torch.tanh(f) * _sigmoid(g)
    return z @ w_o
```

```python
import sys

NAME = "standalone__autoregressive_conv_wavenet__speech"

X_BYTES = 2 * 1000 * 144 * 2
W_BYTES = 31 * 144 * 288 * 2
WO_BYTES = 144 * 144 * 2
OUT_BYTES = X_BYTES
NWG = 252
INBOX = 18432
EXCH_BYTES = 7 * 36 * INBOX
DIAG_OFF = 8 << 20
MARK = 0x7F817F81
OOB = 0x80000000

XOFF = 0
WOFF = 36864
WROFF = WOFF + 65536
WOOFF = WROFF + 8192
ZOFF = WOOFF + 45056
ZS = 304
LDS_BYTES = ZOFF + 8 * ZS


class Asm:
    def __init__(self):
        self.lines = []

    def __call__(self, s):
        self.lines.append("    " + s)

    def label(self, l):
        self.lines.append(l + ":")

    def c(self, s):
        self.lines.append("    ; " + s)

    def text(self):
        return "\n".join(self.lines) + "\n"


def vr(b, n=1):
    return f"v{b}" if n == 1 else f"v[{b}:{b + n - 1}]"


def sr(b, n=1):
    return f"s{b}" if n == 1 else f"s[{b}:{b + n - 1}]"


S_X, S_W, S_WO, S_OUT, S_DBG, S_WS = 16, 20, 24, 28, 32, 36
S_Q, S_NS, S_M, S_WAVE, S_JB, S_LB, S_B1, S_B2, S_CW = 40, 41, 42, 43, 44, 45, 46, 47, 48
S_T0, S_T1, S_T2, S_T3 = 50, 51, 52, 53
S_MARK = 54
S_SPIN = 55
S_M0A, S_M0B = 56, 58
S_ST = 64


def gen(opt):
    fused = opt.get("fused", True)
    diag = opt.get("diag", False)
    a = Asm()
    stamp_n = [0]

    def stamp(k):
        if diag:
            a(f"s_memrealtime {sr(S_ST + 2 * k, 2)}")

    def srd(base, p, nbytes):
        a(f"s_mov_b32 {sr(base)}, {sr(p)}")
        a(f"s_and_b32 {sr(base + 1)}, {sr(p + 1)}, 0xffff")
        a(f"s_mov_b32 {sr(base + 2)}, {nbytes:#x}")
        a(f"s_mov_b32 {sr(base + 3)}, 0x20000")

    def prologue(done):
        a(f"s_cmp_ge_u32 s2, {NWG}")
        a(f"s_cbranch_scc1 {done}")
        a("s_load_dwordx8 s[4:11], s[0:1], 0")
        a("s_load_dwordx4 s[12:15], s[0:1], 32")
        stamp(0)
        a("v_lshrrev_b32 v1, 6, v0")
        a("v_and_b32 v0, 63, v0")
        a(f"s_and_b32 {sr(S_Q)}, s2, 3")
        a(f"v_readfirstlane_b32 {sr(S_WAVE)}, v1")
        a(f"s_lshr_b32 {sr(S_T0)}, s2, 3")
        a(f"s_and_b32 {sr(S_T1)}, s2, 4")
        a(f"s_lshl_b32 {sr(S_T1)}, {sr(S_T1)}, 3")
        a(f"s_add_u32 {sr(S_T0)}, {sr(S_T0)}, {sr(S_T1)}")
        a(f"s_mul_i32 {sr(S_NS)}, {sr(S_T0)}, 37")
        a(f"s_lshr_b32 {sr(S_NS)}, {sr(S_NS)}, 8")
        a(f"s_mul_i32 {sr(S_T1)}, {sr(S_NS)}, 7")
        a(f"s_sub_u32 {sr(S_M)}, {sr(S_T0)}, {sr(S_T1)}")
        a(f"s_lshl_b32 {sr(S_CW)}, {sr(S_NS)}, 2")
        a(f"s_add_u32 {sr(S_CW)}, {sr(S_CW)}, {sr(S_Q)}")
        a(f"s_lshr_b32 {sr(S_T0)}, {sr(S_M)}, 1")
        a(f"s_lshl_b32 {sr(S_T1)}, {sr(S_M)}, 5")
        a(f"s_mul_i32 {sr(S_T2)}, {sr(S_T0)}, 56")
        a(f"s_sub_u32 {sr(S_T1)}, {sr(S_T1)}, {sr(S_T2)}")
        a(f"s_sub_u32 {sr(S_JB)}, 56, {sr(S_T1)}")
        a(f"s_min_u32 {sr(S_JB)}, {sr(S_JB)}, 32")
        a(f"s_mov_b32 {sr(S_MARK)}, {MARK:#x}")

    def seqbase(dst, s, tmp):
        a(f"s_lshr_b32 {sr(dst)}, {sr(s)}, 1")
        a(f"s_mul_i32 {sr(dst)}, {sr(dst)}, 288000")
        a(f"s_and_b32 {sr(tmp)}, {sr(s)}, 1")
        a(f"s_mul_i32 {sr(tmp)}, {sr(tmp)}, 288")
        a(f"s_add_u32 {sr(dst)}, {sr(dst)}, {sr(tmp)}")

    def build_srds():
        a("s_waitcnt lgkmcnt(0)")
        srd(S_X, 4, X_BYTES)
        srd(S_W, 6, W_BYTES)
        srd(S_WO, 8, WO_BYTES)
        srd(S_OUT, 10, OUT_BYTES)
        srd(S_DBG, 12, 256)
        srd(S_WS, 14, (DIAG_OFF + (1 << 20)) if diag else EXCH_BYTES)

    V_AF, V_AG = 100, 104
    V_PA = 108
    V_ZW = 109
    V_ZR = 110
    V_ZR2 = 111
    V_OA = 112
    V_WOA = 113
    V_WOH = 114
    V_WF = 116
    V_WF2 = 136
    V_PF, V_PG = 156, 160
    V_PF2, V_PG2 = 164, 168
    V_D, V_D2 = 172, 176
    V_T = 180
    V_ZB = 192
    V_O, V_O2 = 212, 216
    NVGPR = 224
    W_TASK2 = 4
    W_DT2 = 5

    def p2_prep():
        a.c("phase-2 constants")
        t = V_T
        a(f"v_and_b32 v{t}, 15, v0")
        a(f"v_lshrrev_b32 v{t+1}, 4, v0")
        a(f"v_and_b32 v{t+2}, 1, v0")
        a(f"v_lshlrev_b32 v{t+2}, 4, v{t+2}")
        a(f"v_mov_b32 v{t+3}, 0x3f80")
        a(f"v_lshlrev_b32 v{t+3}, v{t+2}, v{t+3}")
        a(f"v_lshrrev_b32 v{t+4}, 1, v{t}")
        for d in range(4):
            a(f"v_cmp_eq_u32 {sr(S_M0A,2)}, {2*d}, v{t+4}")
            a(f"v_cmp_eq_u32 {sr(S_M0B,2)}, {2*d+1}, v{t+4}")
            a("s_nop 1")
            a(f"v_cndmask_b32 v{V_AF+d}, 0, v{t+3}, {sr(S_M0A,2)}")
            a(f"v_cndmask_b32 v{V_AG+d}, 0, v{t+3}, {sr(S_M0B,2)}")
        a(f"s_mul_i32 {sr(S_T0)}, {sr(S_M)}, 36")
        a(f"s_add_u32 {sr(S_T0)}, {sr(S_T0)}, {sr(S_CW)}")
        a(f"s_mul_i32 {sr(S_T0)}, {sr(S_T0)}, {INBOX}")
        a(f"s_lshl_b32 {sr(S_T1)}, {sr(S_WAVE)}, 8")
        a(f"s_add_u32 {sr(S_T0)}, {sr(S_T0)}, {sr(S_T1)}")
        a(f"v_mul_u32_u24 v{V_PA}, 4608, v{t+1}")
        a(f"v_lshl_add_u32 v{V_PA}, v{t}, 4, v{V_PA}")
        a(f"v_add_u32 v{V_PA}, {sr(S_T0)}, v{V_PA}")
        a(f"v_and_b32 v{t+2}, 3, v{t}")
        a(f"v_lshlrev_b32 v{t+2}, 1, v{t+2}")
        a(f"v_lshrrev_b32 v{t+3}, 1, v{t+1}")
        a(f"v_add_u32 v{t+2}, v{t+2}, v{t+3}")
        a(f"v_mul_u32_u24 v{V_ZW}, {ZS}, v{t+2}")
        a(f"v_lshrrev_b32 v{t+2}, 2, v{t}")
        a(f"v_lshl_add_u32 v{V_ZW}, v{t+2}, 3, v{V_ZW}")
        a(f"v_and_b32 v{t+2}, 1, v{t+1}")
        a(f"v_lshl_add_u32 v{V_ZW}, v{t+2}, 2, v{V_ZW}")
        a(f"s_lshl_b32 {sr(S_T1)}, {sr(S_WAVE)}, 5")
        a(f"s_add_u32 {sr(S_T1)}, {sr(S_T1)}, {ZOFF}")
        a(f"v_add_u32 v{V_ZW}, {sr(S_T1)}, v{V_ZW}")
        a(f"v_and_b32 v{t+2}, 7, v{t}")
        a(f"v_mul_u32_u24 v{t+2}, {ZS}, v{t+2}")
        a(f"v_add_u32 v{t+2}, {ZOFF}, v{t+2}")
        a(f"v_lshl_add_u32 v{V_ZR}, v{t+1}, 4, v{t+2}")
        a(f"v_lshl_add_u32 v{V_ZR2}, v{t+1}, 3, v{t+2}")
        a(f"v_bfe_u32 v{t+2}, v0, 2, 2")
        a(f"v_and_b32 v{t+3}, 3, v0")
        a(f"v_lshlrev_b32 v{t+3}, 3, v{t+3}")
        a(f"s_lshl_b32 {sr(S_T1)}, {sr(S_WAVE)}, 5")
        a(f"s_add_u32 {sr(S_T1)}, {sr(S_T1)}, {WOOFF}")
        a(f"v_add_u32 v{t+3}, {sr(S_T1)}, v{t+3}")
        a(f"v_lshl_add_u32 v{t+4}, v{t+1}, 3, v{t+2}")
        a(f"v_mul_u32_u24 v{t+4}, 288, v{t+4}")
        a(f"v_add_u32 v{V_WOA}, v{t+4}, v{t+3}")
        a(f"v_lshl_add_u32 v{t+4}, v{t+1}, 2, v{t+2}")
        a(f"v_mul_u32_u24 v{t+4}, 288, v{t+4}")
        a(f"v_add_u32 v{V_WOH}, v{t+4}, v{t+3}")
        a(f"s_cmp_lt_u32 {sr(S_CW)}, 32")
        a(f"s_cselect_b64 {sr(S_M0A,2)}, -1, 0")
        a(f"s_and_b32 {sr(S_T0)}, {sr(S_CW)}, 16")
        a(f"s_and_b32 {sr(S_T1)}, {sr(S_CW)}, 3")
        a(f"s_lshl_b32 {sr(S_T1)}, {sr(S_T1)}, 2")
        a(f"s_add_u32 {sr(S_T0)}, {sr(S_T0)}, {sr(S_T1)}")
        a(f"s_and_b32 {sr(S_T1)}, {sr(S_CW)}, 3")
        a(f"s_lshl_b32 {sr(S_T1)}, {sr(S_T1)}, 3")
        a(f"s_cmp_lt_u32 {sr(S_CW)}, 32")
        a(f"s_cselect_b32 {sr(S_T0)}, {sr(S_T0)}, {sr(S_T1)}")
        a(f"s_lshr_b32 {sr(S_T1)}, {sr(S_CW)}, 1")
        a(f"s_and_b32 {sr(S_T1)}, {sr(S_T1)}, 6")
        a(f"s_cmp_lt_u32 {sr(S_CW)}, 32")
        a(f"s_cselect_b32 {sr(S_T1)}, {sr(S_T1)}, 8")
        a(f"s_lshl_b32 {sr(S_T2)}, {sr(S_M)}, 5")
        a(f"s_add_u32 {sr(S_T0)}, {sr(S_T0)}, {sr(S_T2)}")
        a(f"v_lshrrev_b32 v{t+2}, 1, v{t}")
        a(f"v_cndmask_b32 v{t+2}, v{t}, v{t+2}, {sr(S_M0A,2)}")
        a(f"v_and_b32 v{t+3}, 1, v{t}")
        a(f"v_cndmask_b32 v{t+3}, 0, v{t+3}, {sr(S_M0A,2)}")
        a(f"v_add_u32 v{t+2}, {sr(S_T0)}, v{t+2}")
        a(f"v_add_u32 v{t+3}, {sr(S_T1)}, v{t+3}")
        a(f"v_mul_u32_u24 v{t+4}, 1171, v{t+2}")
        a(f"v_lshrrev_b32 v{t+4}, 16, v{t+4}")
        a(f"v_mul_u32_u24 v{t+5}, 56, v{t+4}")
        a(f"v_sub_u32 v{t+2}, v{t+2}, v{t+5}")
        a(f"v_mul_u32_u24 v{t+2}, 9, v{t+2}")
        a(f"v_add_u32 v{t+2}, v{t+2}, v{t+3}")
        a(f"v_lshrrev_b32 v{t+5}, 1, v{t+4}")
        a(f"v_mul_u32_u24 v{t+5}, 288000, v{t+5}")
        a(f"v_and_b32 v{t+4}, 1, v{t+4}")
        a(f"v_mul_u32_u24 v{t+4}, 288, v{t+4}")
        a(f"v_mul_u32_u24 v{t+3}, 576, v{t+2}")
        a(f"v_add3_u32 v{t+3}, v{t+3}, v{t+4}, v{t+5}")
        a(f"v_lshl_add_u32 v{t+3}, v{t+1}, 3, v{t+3}")
        a(f"s_lshl_b32 {sr(S_T1)}, {sr(S_WAVE)}, 5")
        a(f"v_add_u32 v{t+3}, {sr(S_T1)}, v{t+3}")
        a(f"v_mov_b32 v{t+4}, 500")
        a(f"v_cmp_lt_u32 {sr(S_M0A,2)}, v{t+2}, v{t+4}")
        a(f"v_cmp_gt_u32 {sr(S_M0B,2)}, 8, v{t}")
        a(f"v_mov_b32 v{t+4}, {OOB:#x}")
        a(f"s_and_b64 {sr(S_M0A,2)}, {sr(S_M0A,2)}, {sr(S_M0B,2)}")
        a("s_nop 1")
        a(f"v_cndmask_b32 v{V_OA}, v{t+4}, v{t+3}, {sr(S_M0A,2)}")

    LDF = "sc1" if fused else ""

    def poll_issue(pf, pg, extra):
        a(f"buffer_load_dwordx4 {vr(pf,4)}, v{V_PA}, {sr(S_WS,4)}, 0 offen offset:{extra} {LDF}")
        a(f"buffer_load_dwordx4 {vr(pg,4)}, v{V_PA}, {sr(S_WS,4)}, 0 offen offset:{extra+2304} {LDF}")

    def wo_frags(dst, extra):
        for ks in range(4):
            a(f"ds_read_b64_tr_b16 {vr(dst+4*ks,2)}, v{V_WOA} offset:{ks*32*288+extra}")
            a(f"ds_read_b64_tr_b16 {vr(dst+4*ks+2,2)}, v{V_WOA} offset:{ks*32*288+4*288+extra}")
        a(f"ds_read_b64_tr_b16 {vr(dst+16,2)}, v{V_WOH} offset:{128*288+extra}")

    def check(regs_list, lbl_retry):
        first = True
        for r in regs_list:
            a(f"v_cmp_eq_u32 {'vcc' if first else sr(S_M0A,2)}, {sr(S_MARK)}, v{r}")
            if not first:
                a(f"s_or_b64 vcc, vcc, {sr(S_M0A,2)}")
            first = False
        a(f"s_cbranch_vccnz {lbl_retry}")

    LOG2E = 1.4426950408889634

    def gates(pf, pg, d, extra_zw):
        t = V_T
        a(f"v_mfma_f32_16x16x32_bf16 {vr(d,4)}, {vr(V_AF,4)}, {vr(pf,4)}, 0")
        a(f"v_mfma_f32_16x16x32_bf16 {vr(d,4)}, {vr(V_AG,4)}, {vr(pg,4)}, {vr(d,4)}")
        a("s_nop 7")
        a(f"v_mul_f32 v{t}, 0x4038aa3b, v{d}")
        a(f"v_mul_f32 v{t+1}, 0x4038aa3b, v{d+1}")
        a(f"v_mul_f32 v{t+2}, 0xbfb8aa3b, v{d+2}")
        a(f"v_mul_f32 v{t+3}, 0xbfb8aa3b, v{d+3}")
        for k in range(4):
            a(f"v_exp_f32 v{t+k}, v{t+k}")
        a("s_nop 0")
        for k in range(4):
            a(f"v_add_f32 v{t+k}, 1.0, v{t+k}")
        for k in range(4):
            a(f"v_rcp_f32 v{t+k}, v{t+k}")
        a("s_nop 0")
        a(f"v_fma_f32 v{t}, v{t}, -2.0, 1.0")
        a(f"v_fma_f32 v{t+1}, v{t+1}, -2.0, 1.0")
        a(f"v_mul_f32 v{t}, v{t}, v{t+2}")
        a(f"v_mul_f32 v{t+1}, v{t+1}, v{t+3}")
        a(f"v_cvt_pk_bf16_f32 v{t}, v{t}, v{t+1}")
        a(f"ds_write_b32 v{V_ZW}, v{t} offset:{extra_zw}")

    def outproj(wf, o, extra):
        for ks in range(4):
            a(f"v_mfma_f32_16x16x32_bf16 {vr(o,4)}, {vr(wf+4*ks,4)}, {vr(V_ZB+4*ks,4)}, {'0' if ks == 0 else vr(o,4)}")
        a("s_nop 7")
        a(f"v_mfma_f32_16x16x16_bf16 {vr(o,4)}, {vr(wf+16,2)}, {vr(V_ZB+16,2)}, {vr(o,4)}")
        a("s_nop 7")
        a(f"v_cvt_pk_bf16_f32 v{o}, v{o}, v{o+1}")
        a(f"v_cvt_pk_bf16_f32 v{o+1}, v{o+2}, v{o+3}")
        a(f"buffer_store_dwordx2 {vr(o,2)}, v{V_OA}, {sr(S_OUT,4)}, 0 offen offset:{extra}")

    def phase2(pfx):
        t2off = (8 - W_TASK2) * 256
        a(f"s_mov_b32 {sr(S_SPIN)}, 0")
        a(f"s_cmp_eq_u32 {sr(S_WAVE)}, {W_TASK2}")
        a(f"s_cbranch_scc1 {pfx}_two")
        a.label(f"{pfx}_one")
        poll_issue(V_PF, V_PG, 0)
        wo_frags(V_WF, 0)
        a(f"s_cmp_eq_u32 {sr(S_WAVE)}, {W_DT2}")
        a(f"s_cbranch_scc0 {pfx}_one_w")
        wo_frags(V_WF2, (8 - W_DT2) * 32)
        a.label(f"{pfx}_one_w")
        a("s_waitcnt vmcnt(0)")
        if fused:
            check(list(range(V_PF, V_PF + 8)), f"{pfx}_one_retry")
        stamp(5)
        gates(V_PF, V_PG, V_D, 0)
        a(f"s_branch {pfx}_join")
        if fused:
            a.label(f"{pfx}_one_retry")
            a(f"s_add_u32 {sr(S_SPIN)}, {sr(S_SPIN)}, 1")
            a(f"s_cmp_gt_u32 {sr(S_SPIN)}, 0x40000")
            a(f"s_cbranch_scc1 {pfx}_join")
            poll_issue(V_PF, V_PG, 0)
            a(f"s_branch {pfx}_one_w")
        a.label(f"{pfx}_two")
        poll_issue(V_PF, V_PG, 0)
        poll_issue(V_PF2, V_PG2, t2off)
        wo_frags(V_WF, 0)
        a.label(f"{pfx}_two_w")
        a("s_waitcnt vmcnt(0)")
        if fused:
            check(list(range(V_PF, V_PF + 16)), f"{pfx}_two_retry")
        stamp(5)
        gates(V_PF, V_PG, V_D, 0)
        gates(V_PF2, V_PG2, V_D2, (8 - W_TASK2) * 32)
        if fused:
            a(f"s_branch {pfx}_join")
            a.label(f"{pfx}_two_retry")
            a(f"s_add_u32 {sr(S_SPIN)}, {sr(S_SPIN)}, 1")
            a(f"s_cmp_gt_u32 {sr(S_SPIN)}, 0x40000")
            a(f"s_cbranch_scc1 {pfx}_join")
            poll_issue(V_PF, V_PG, 0)
            poll_issue(V_PF2, V_PG2, t2off)
            a(f"s_branch {pfx}_two_w")
        a.label(f"{pfx}_join")
        a("s_waitcnt lgkmcnt(0)")
        a("s_barrier")
        for ks in range(4):
            a(f"ds_read_b128 {vr(V_ZB+4*ks,4)}, v{V_ZR} offset:{ks*64}")
        a(f"ds_read_b64 {vr(V_ZB+16,2)}, v{V_ZR2} offset:256")
        a("s_waitcnt lgkmcnt(0)")
        outproj(V_WF, V_O, 0)
        a(f"s_cmp_eq_u32 {sr(S_WAVE)}, {W_DT2}")
        a(f"s_cbranch_scc0 {pfx}_end")
        outproj(V_WF2, V_O2, (8 - W_DT2) * 32)
        a.label(f"{pfx}_end")
        stamp(6)

    def diag_dump(slot):
        if not diag:
            return
        a("s_waitcnt vmcnt(0)")
        stamp(7)
        a(f"s_getreg_b32 {sr(S_T0)}, hwreg(HW_REG_XCC_ID)")
        a(f"s_getreg_b32 {sr(S_T2)}, hwreg(HW_REG_HW_ID)")
        a("s_waitcnt lgkmcnt(0)")
        a(f"v_mov_b32 v2, {sr(S_ST)}")
        for k in range(1, 8):
            a(f"v_writelane_b32 v2, {sr(S_ST+2*k)}, {k}")
        a(f"v_writelane_b32 v2, {sr(S_T0)}, 8")
        a(f"v_writelane_b32 v2, {sr(S_SPIN)}, 9")
        a(f"v_writelane_b32 v2, {sr(S_T2)}, 10")
        a(f"s_lshl_b32 {sr(S_T0)}, s2, 3")
        a(f"s_add_u32 {sr(S_T0)}, {sr(S_T0)}, {sr(S_WAVE)}")
        a(f"s_lshl_b32 {sr(S_T0)}, {sr(S_T0)}, 6")
        a(f"s_add_u32 {sr(S_T0)}, {sr(S_T0)}, {DIAG_OFF + slot * (256 << 10)}")
        a(f"v_lshlrev_b32 v3, 2, v0")
        a(f"v_cmp_gt_u32 vcc, 16, v0")
        a(f"v_mov_b32 v4, {OOB:#x}")
        a("s_nop 1")
        a(f"v_cndmask_b32 v3, v4, v3, vcc")
        a(f"buffer_store_dword v2, v3, {sr(S_WS,4)}, {sr(S_T0)} offen")

    def wo_dma(lwreg_shift=None):
        a(f"s_lshl_b32 {sr(S_T0)}, {sr(S_T3)}, 10")
        a(f"v_lshlrev_b32 v10, 4, v0")
        a(f"v_add_u32 v10, {sr(S_T0)}, v10")
        a(f"s_add_u32 {sr(S_T0)}, {sr(S_T0)}, {WOOFF}")
        a(f"s_mov_b32 {sr(S_T1)}, 0")
        for n in range(11):
            a(f"s_mov_b32 m0, {sr(S_T0)}")
            a(f"s_add_u32 {sr(S_T0)}, {sr(S_T0)}, 4096")
            a(f"buffer_load_dwordx4 v10, {sr(S_WO,4)}, {sr(S_T1)} offen lds")
            a(f"s_add_u32 {sr(S_T1)}, {sr(S_T1)}, 4096")

    STAGES = opt.get("stages", [0, 2, 5, 9])

    K1 = NAME + "_kernel" if fused else "conv_kernel"
    a.lines.append(f".globl {K1}\n.p2align 8\n.type {K1},@function")
    a.label(K1)
    prologue("L_done")
    a(f"s_cmp_ge_u32 {sr(S_WAVE)}, 4")
    a("s_cbranch_scc1 L_loader")

    V_XB, V_XR, V_WB, V_WR, V_SA, V_SB = 2, 3, 4, 5, 6, 7
    V_ACC = 12
    V_RX = 48
    a.c("compute wave setup")
    a("v_and_b32 v8, 15, v0")
    a("v_lshrrev_b32 v9, 4, v0")
    a(f"s_lshr_b32 {sr(S_T0)}, {sr(S_WAVE)}, 1")
    a(f"s_and_b32 {sr(S_T1)}, {sr(S_WAVE)}, 1")
    a(f"s_lshl_b32 {sr(S_T2)}, {sr(S_T0)}, 4")
    a(f"v_add_u32 v10, {sr(S_T2)}, v8")
    a(f"v_cmp_le_u32 vcc, {sr(S_JB)}, v10")
    a("v_mul_u32_u24 v11, 9, v10")
    a("v_add_u32 v11, 2, v11")
    a("v_add_u32 v1, 32, v11")
    a("v_cndmask_b32 v11, v11, v1, vcc")
    a("v_mul_u32_u24 v11, 96, v11")
    a(f"v_lshl_add_u32 v{V_XB}, v9, 4, v11")
    a(f"s_mul_i32 {sr(S_T2)}, {sr(S_Q)}, {8*96}")
    a(f"s_sub_u32 {sr(S_T2)}, {24*96+64}, {sr(S_T2)}")
    a(f"v_add_u32 v{V_XR}, {sr(S_T2)}, v11")
    a("v_lshrrev_b32 v1, 1, v9")
    a("v_mul_u32_u24 v1, 96, v1")
    a(f"v_sub_u32 v{V_XR}, v{V_XR}, v1")
    a("v_and_b32 v1, 1, v9")
    a(f"v_lshl_add_u32 v{V_XR}, v1, 4, v{V_XR}")
    a("v_bfe_u32 v10, v0, 2, 2")
    a("v_lshl_add_u32 v10, v9, 3, v10")
    a(f"v_lshlrev_b32 v{V_WB}, 6, v10")
    a("v_bfe_u32 v10, v0, 1, 1")
    a(f"s_lshl_b32 {sr(S_T2)}, {sr(S_T1)}, 1")
    a(f"v_add_u32 v10, {sr(S_T2)}, v10")
    a("v_lshlrev_b32 v1, 1, v1")
    a("v_xor_b32 v10, v10, v1")
    a(f"v_lshl_add_u32 v{V_WB}, v10, 4, v{V_WB}")
    a("v_and_b32 v10, 1, v0")
    a(f"v_lshl_add_u32 v{V_WB}, v10, 3, v{V_WB}")
    a(f"v_add_u32 v{V_WB}, {WOFF}, v{V_WB}")
    a(f"v_add_u32 v{V_WR}, {WROFF - WOFF}, v{V_WB}")
    a(f"s_mul_i32 {sr(S_T2)}, {sr(S_Q)}, 4608")
    a(f"s_lshl_b32 {sr(S_T3)}, {sr(S_NS)}, 9")
    a(f"s_add_u32 {sr(S_T2)}, {sr(S_T2)}, {sr(S_T3)}")
    a(f"s_lshl_b32 {sr(S_T3)}, {sr(S_T1)}, 8")
    a(f"s_add_u32 {sr(S_T2)}, {sr(S_T2)}, {sr(S_T3)}")
    a(f"s_mul_i32 {sr(S_T3)}, {sr(S_M)}, {36*INBOX}")
    a(f"s_add_u32 {sr(S_T2)}, {sr(S_T2)}, {sr(S_T3)}")
    a(f"v_lshlrev_b32 v10, 6, v9")
    a(f"v_add_u32 v10, {sr(S_T2)}, v10")
    a(f"s_mul_i32 {sr(S_T3)}, {sr(S_T0)}, {16*INBOX}")
    a("v_lshrrev_b32 v1, 2, v8")
    a(f"v_mul_u32_u24 v1, {INBOX}, v1")
    a(f"v_add3_u32 v{V_SA}, v10, v1, {sr(S_T3)}")
    a("v_and_b32 v1, 3, v8")
    a(f"v_lshl_add_u32 v{V_SA}, v1, 4, v{V_SA}")
    a(f"s_mul_i32 {sr(S_T3)}, {sr(S_T0)}, {2*INBOX}")
    a(f"s_add_u32 {sr(S_T3)}, {sr(S_T3)}, {32*INBOX}")
    a("v_lshrrev_b32 v1, 3, v8")
    a(f"v_mul_u32_u24 v1, {INBOX}, v1")
    a(f"v_add3_u32 v{V_SB}, v10, v1, {sr(S_T3)}")
    a("v_and_b32 v1, 7, v8")
    a(f"v_lshl_add_u32 v{V_SB}, v1, 3, v{V_SB}")
    if fused:
        p2_prep()
    build_srds()
    stamp(1)
    if diag:
        a("s_waitcnt lgkmcnt(0)")

    mf = []
    for i in range(31):
        for aa in range(8, -1, -1):
            mf.append((aa, ("W", i), ("X", aa - i), i == 0))
    for p in range(4):
        for aa in range(8, -1, -1):
            mf.append((aa, ("WR", p), ("XR", aa - 2 * p), False))
    first_use, last_use = {}, {}
    for idx, (aa, wk, xk, _) in enumerate(mf):
        for k in (wk, xk):
            first_use.setdefault(k, idx)
            last_use[k] = idx
    LEAD = opt.get("lead", 14)
    nst = len(STAGES)

    def stage_of(k):
        if k[0] == "W":
            n = k[1] // 2
            for s, lim in enumerate(STAGES):
                if n <= lim:
                    return s
            return nst
        if k[0] == "WR":
            return nst
        return 0
    order = sorted(first_use, key=lambda k: (first_use[k], k[0][0] != "W"))
    free = list(range(V_RX, V_AF, 4))
    reg = {}
    issued = []
    bar_done = -1
    pend = list(order)
    outstanding = []

    def issue(k):
        nonlocal bar_done
        s = stage_of(k)
        while bar_done < s:
            bar_done += 1
            a("s_barrier")
            if bar_done == 0:
                stamp(2)
                if diag:
                    a("s_waitcnt lgkmcnt(0)")
        r = free.pop(0)
        reg[k] = r
        if k[0] == "W":
            a(f"ds_read_b64_tr_b16 {vr(r,2)}, v{V_WB} offset:{k[1]*2048}")
            a(f"ds_read_b64_tr_b16 {vr(r+2,2)}, v{V_WB} offset:{k[1]*2048+256}")
            outstanding.extend([k, k])
        elif k[0] == "WR":
            a(f"ds_read_b64_tr_b16 {vr(r,2)}, v{V_WR} offset:{k[1]*2048}")
            a(f"ds_read_b64_tr_b16 {vr(r+2,2)}, v{V_WR} offset:{k[1]*2048+256}")
            outstanding.extend([k, k])
        elif k[0] == "X":
            a(f"ds_read_b128 {vr(r,4)}, v{V_XB} offset:{(k[1]+30)*96}")
            outstanding.append(k)
        else:
            a(f"ds_read_b128 {vr(r,4)}, v{V_XR} offset:{(k[1]+6)*96}")
            outstanding.append(k)

    for idx, (aa, wk, xk, first) in enumerate(mf):
        n_iss = 0
        while pend and free and first_use[pend[0]] <= idx + LEAD and len(outstanding) <= 12 and (n_iss < 1 or first_use[pend[0]] <= idx + 1 or idx == 0):
            issue(pend.pop(0))
            n_iss += 1
        assert wk in reg and xk in reg, (idx, wk, xk)
        need = max([i for i, k in enumerate(outstanding) if k in (wk, xk)], default=-1)
        if need >= 0:
            left = len(outstanding) - need - 1
            a(f"s_waitcnt lgkmcnt({left})")
            del outstanding[:need + 1]
        acc = V_ACC + 4 * aa
        a(f"v_mfma_f32_16x16x32_bf16 {vr(acc,4)}, {vr(reg[wk],4)}, {vr(reg[xk],4)}, {'0' if first else vr(acc,4)}")
        for k in (wk, xk):
            if last_use[k] == idx:
                free.append(reg[k])
    assert bar_done == nst and not pend
    stamp(3)
    if fused:
        a("s_barrier")
    STF = "sc1" if fused else ""
    a("s_nop 7")
    t = V_RX
    a(f"v_cvt_pk_bf16_f32 v{t}, v{V_ACC+32}, v{V_ACC+33}")
    a(f"v_cvt_pk_bf16_f32 v{t+1}, v{V_ACC+34}, v{V_ACC+35}")
    a(f"buffer_store_dwordx2 {vr(t,2)}, v{V_SB}, {sr(S_WS,4)}, 0 offen {STF}")
    for ap in (3, 2, 1, 0):
        t = V_RX + 4 + 4 * ap
        for h in range(2):
            b = V_ACC + 4 * (2 * ap + h)
            a(f"v_cvt_pk_bf16_f32 v{t+2*h}, v{b}, v{b+1}")
            a(f"v_cvt_pk_bf16_f32 v{t+2*h+1}, v{b+2}, v{b+3}")
        a(f"s_mov_b32 {sr(S_T0)}, {ap*4*INBOX}")
        a(f"buffer_store_dwordx4 {vr(t,4)}, v{V_SA}, {sr(S_WS,4)}, {sr(S_T0)} offen {STF}")
    stamp(4)
    if fused:
        a("s_branch L_p2")
    else:
        diag_dump(0)
        a("s_endpgm")

    a.label("L_loader")
    a(f"s_sub_u32 {sr(S_T3)}, {sr(S_WAVE)}, 4")
    a(f"s_mul_i32 {sr(S_LB)}, {sr(S_JB)}, 9")
    a(f"s_add_u32 {sr(S_LB)}, {sr(S_LB)}, 32")
    seqbase(S_B1, S_T0, S_T2)
    a(f"s_mul_i32 {sr(S_T1)}, {sr(S_T1)}, {9*576}")
    a(f"s_add_u32 {sr(S_B1)}, {sr(S_B1)}, {sr(S_T1)}")
    a(f"s_sub_u32 {sr(S_B1)}, {sr(S_B1)}, {32*576}")
    a(f"s_add_u32 {sr(S_T0)}, {sr(S_T0)}, 1")
    seqbase(S_B2, S_T0, S_T2)
    a(f"s_add_u32 {sr(S_T1)}, {sr(S_LB)}, 32")
    a(f"s_mul_i32 {sr(S_T1)}, {sr(S_T1)}, 576")
    a(f"s_sub_u32 {sr(S_B2)}, {sr(S_B2)}, {sr(S_T1)}")
    a(f"s_lshl_b32 {sr(S_T0)}, {sr(S_T3)}, 6")
    a(f"v_add_u32 v1, {sr(S_T0)}, v0")
    a(f"s_lshl_b32 {sr(S_T1)}, {sr(S_Q)}, 6")
    a(f"v_mov_b32 v2, {sr(S_T1)}")
    a(f"v_mov_b32 v3, {sr(S_B1)}")
    a(f"v_mov_b32 v4, {sr(S_B2)}")
    a(f"v_mov_b32 v5, {OOB:#x}")
    VXO = 20
    for n in range(3):
        a(f"v_add_u32 v6, {256*n}, v1")
        a("v_mul_u32_u24 v7, 43691, v6")
        a("v_lshrrev_b32 v7, 18, v7")
        a("v_mul_u32_u24 v8, 6, v7")
        a("v_sub_u32 v6, v6, v8")
        a("v_cmp_gt_u32 vcc, 4, v6")
        a("v_mul_u32_u24 v8, 576, v7")
        a("v_lshl_add_u32 v8, v6, 4, v8")
        a("v_mov_b32 v9, 192")
        a("v_cndmask_b32 v9, v9, v2, vcc")
        a("v_add_u32 v8, v8, v9")
        a(f"v_subrev_u32 v7, {sr(S_LB)}, v7")
        for k in range(3):
            if k:
                a("v_add_u32 v7, 128, v7")
                a(f"v_add_u32 v8, {128*576}, v8")
            a(f"v_cmp_gt_i32 {sr(S_M0A,2)}, 0, v7")
            a(f"v_cmp_gt_u32 {sr(S_M0B,2)}, 32, v7")
            a("s_nop 0")
            a(f"v_cndmask_b32 v9, v4, v3, {sr(S_M0A,2)}")
            a("v_add_u32 v9, v9, v8")
            a(f"v_cndmask_b32 v{VXO+n+3*k}, v9, v5, {sr(S_M0B,2)}")
    a(f"s_cmp_eq_u32 {sr(S_T3)}, 0")
    a(f"s_cselect_b64 {sr(S_M0A,2)}, -1, 0")
    a(f"v_cndmask_b32 v{VXO+8}, v5, v{VXO+8}, {sr(S_M0A,2)}")
    a("v_lshrrev_b32 v6, 2, v0")
    a("v_mul_u32_u24 v30, 576, v6")
    a("v_lshrrev_b32 v6, 4, v0")
    a("v_and_b32 v6, 2, v6")
    a("v_and_b32 v7, 3, v0")
    a("v_xor_b32 v6, v6, v7")
    a("v_lshl_add_u32 v30, v6, 4, v30")
    a(f"s_lshl_b32 {sr(S_T0)}, {sr(S_NS)}, 6")
    a(f"v_add_u32 v31, {sr(S_T0)}, v30")
    a(f"s_mul_i32 {sr(S_T1)}, {sr(S_Q)}, {32*576}")
    a(f"v_add_u32 v30, {sr(S_T1)}, v31")
    if fused:
        for k in range(4):
            a(f"v_mov_b32 v{12+k}, {sr(S_MARK)}")
        a(f"s_lshl_b32 {sr(S_T0)}, {sr(S_T3)}, 10")
        a("v_lshlrev_b32 v32, 4, v0")
        a(f"v_add_u32 v32, {sr(S_T0)}, v32")
        for k in range(1, 5):
            a(f"v_add_u32 v{32+k}, {4096*k}, v32")
        a(f"s_cmp_lt_u32 {sr(S_T3)}, 2")
        a(f"s_cselect_b64 {sr(S_M0A,2)}, -1, 0")
        a(f"v_cndmask_b32 v36, v5, v36, {sr(S_M0A,2)}")
        a(f"s_mul_i32 {sr(S_T0)}, {sr(S_M)}, 36")
        a(f"s_add_u32 {sr(S_T1)}, {sr(S_T0)}, {sr(S_CW)}")
        a("v_mov_b32 v37, 1")
        a("v_cmp_eq_u32 vcc, 0, v1")
        a(f"v_mov_b32 v38, {sr(S_T1)}")
        a(f"v_cmp_gt_u32 {sr(S_M0A,2)}, 36, v0")
        a(f"v_cndmask_b32 v38, v5, v38, vcc")
        a(f"v_add_u32 v39, {sr(S_T0)}, v0")
        a(f"v_mov_b32 v6, {sr(S_T0)}")
        a(f"v_cndmask_b32 v39, v6, v39, {sr(S_M0A,2)}")
    build_srds()
    stamp(1)
    ops = []
    a(f"s_lshl_b32 {sr(S_T0)}, {sr(S_T3)}, 10")
    for n in range(9):
        a(f"s_mov_b32 m0, {sr(S_T0)}")
        a(f"s_add_u32 {sr(S_T0)}, {sr(S_T0)}, 4096")
        a(f"buffer_load_dwordx4 v{VXO+n}, {sr(S_X,4)}, 0 offen lds")
        ops.append(("x", n))
    a(f"s_lshr_b32 {sr(S_T1)}, {sr(S_T3)}, 1")
    a(f"s_mul_i32 {sr(S_T1)}, {sr(S_T1)}, 82944")
    a(f"s_and_b32 {sr(S_T2)}, {sr(S_T3)}, 1")
    a(f"s_mul_i32 {sr(S_T2)}, {sr(S_T2)}, 9216")
    a(f"s_add_u32 {sr(S_T1)}, {sr(S_T1)}, {sr(S_T2)}")
    INV_AFTER = opt.get("inv_after", 5)
    for n in range(16):
        a(f"s_mov_b32 m0, {sr(S_T0)}")
        a(f"s_add_u32 {sr(S_T0)}, {sr(S_T0)}, 4096")
        a(f"buffer_load_dwordx4 v30, {sr(S_W,4)}, {sr(S_T1)} offen lds")
        a(f"s_add_u32 {sr(S_T1)}, {sr(S_T1)}, {2*82944}")
        ops.append(("w", n))
        if fused and n == INV_AFTER:
            a(f"s_mul_i32 {sr(S_T2)}, {sr(S_M)}, 36")
            a(f"s_add_u32 {sr(S_T2)}, {sr(S_T2)}, {sr(S_CW)}")
            a(f"s_mul_i32 {sr(S_T2)}, {sr(S_T2)}, {INBOX}")
            for k in range(4):
                a(f"buffer_store_dwordx4 v[12:15], v{32+k}, {sr(S_WS,4)}, {sr(S_T2)} offen sc1")
                ops.append(("inv", k))
            a(f"buffer_store_dwordx4 v[12:15], v36, {sr(S_WS,4)}, {sr(S_T2)} offen sc1")
            ops.append(("inv", 4))
    a(f"s_lshl_b32 {sr(S_T1)}, {sr(S_Q)}, 3")
    a(f"s_add_u32 {sr(S_T1)}, {sr(S_T1)}, {sr(S_T3)}")
    a(f"s_mul_i32 {sr(S_T1)}, {sr(S_T1)}, 82944")
    a(f"s_add_u32 {sr(S_T1)}, {sr(S_T1)}, {128*576}")
    for n in range(2):
        a(f"s_mov_b32 m0, {sr(S_T0)}")
        a(f"s_add_u32 {sr(S_T0)}, {sr(S_T0)}, 4096")
        a(f"buffer_load_dwordx4 v31, {sr(S_W,4)}, {sr(S_T1)} offen lds")
        a(f"s_add_u32 {sr(S_T1)}, {sr(S_T1)}, {4*82944}")
        ops.append(("wr", n))
    if fused:
        wo_dma()
        ops.extend([("wo", n) for n in range(11)])
    stamp(2)
    flagged = not fused
    for s, lim in enumerate(STAGES + [None]):
        tag = ("w", lim) if lim is not None else ("wr", 1)
        pos = ops.index(tag)
        a(f"s_waitcnt vmcnt({len(ops) - pos - 1})")
        a("s_barrier")
        if s == 0:
            stamp(3)
            if fused:
                p2_prep()
        if not flagged and pos > ops.index(("inv", 4)):
            a(f"buffer_store_byte v37, v38, {sr(S_DBG,4)}, 0 offen sc1")
            ops.append(("flag", 0))
            flagged = True
    stamp(4)
    if fused:
        a(f"s_cmp_eq_u32 {sr(S_WAVE)}, 4")
        a("s_cbranch_scc0 L_ld_wait")
        a(f"s_mov_b32 {sr(S_SPIN)}, 0")
        a.label("L_flagpoll")
        a(f"buffer_load_ubyte v2, v39, {sr(S_DBG,4)}, 0 offen sc1")
        a(f"s_add_u32 {sr(S_SPIN)}, {sr(S_SPIN)}, 1")
        a(f"s_cmp_gt_u32 {sr(S_SPIN)}, 0x40000")
        a("s_cbranch_scc1 L_ld_wait")
        a("s_waitcnt vmcnt(0)")
        a("v_cmp_eq_u32 vcc, 0, v2")
        a("s_cbranch_vccnz L_flagpoll")
        a.label("L_ld_wait")
        a("s_waitcnt vmcnt(0)")
        a("s_barrier")
        a.label("L_p2")
        phase2("P2")
        diag_dump(0)
    else:
        diag_dump(0)
    a.label("L_done")
    a("s_endpgm")

    kernels = [(K1, NVGPR)]
    if not fused:
        K2 = "proj_kernel"
        a.lines.append(f".globl {K2}\n.p2align 8\n.type {K2},@function")
        a.label(K2)
        prologue("L2_done")
        p2_prep()
        build_srds()
        stamp(1)
        a(f"s_cmp_lt_u32 {sr(S_WAVE)}, 4")
        a("s_cbranch_scc1 L2_go")
        a(f"s_sub_u32 {sr(S_T3)}, {sr(S_WAVE)}, 4")
        wo_dma()
        a("s_waitcnt vmcnt(0)")
        a.label("L2_go")
        stamp(2)
        a("s_barrier")
        stamp(3)
        phase2("Q2")
        diag_dump(1)
        a.label("L2_done")
        a("s_endpgm")
        kernels.append((K2, NVGPR))

    head = open("cdna_kernels/" + NAME + ".s.ref").read().split("; Override")[0]
    if fused:
        head += f"; @launch grid=({NWG},1,1) block=(512,1,1) lds={LDS_BYTES}\n"
    else:
        for k, _ in kernels:
            head += f"; @launch kernel={k} grid=({NWG},1,1) block=(512,1,1) lds={LDS_BYTES}\n"
    head += '.amdgcn_target "amdgcn-amd-amdhsa--gfx950"\n.text\n'
    tail = '.section .rodata,"a"\n'
    for k, nv in kernels:
        tail += f""".p2align 6
.amdhsa_kernel {k}
  .amdhsa_next_free_vgpr {nv}
  .amdhsa_next_free_sgpr 102
  .amdhsa_accum_offset {nv}
  .amdhsa_group_segment_fixed_size 0
  .amdhsa_kernarg_size 48
  .amdhsa_user_sgpr_count 2
  .amdhsa_user_sgpr_kernarg_segment_ptr 1
  .amdhsa_system_sgpr_workgroup_id_x 1
.end_amdhsa_kernel
"""
    return head + a.text() + tail


if __name__ == "__main__":
    out = sys.argv[1]
    opt = {}
    for kv in sys.argv[2:]:
        k, v = kv.split("=")
        opt[k] = eval(v)
    open(out, "w").write(gen(opt))
```

```python
import sys

NAME = "standalone__autoregressive_conv_wavenet__speech"

X_BYTES = 2 * 1000 * 144 * 2
W_BYTES = 31 * 144 * 288 * 2
WO_BYTES = 144 * 144 * 2
OUT_BYTES = X_BYTES
NWG = 252
INBOX = 18432
EXCH_BYTES = 7 * 36 * INBOX
DIAG_OFF = 8 << 20
MARK = 0x7F817F81
OOB = 0x80000000

XOFF = 0
WOFF = 36864
WROFF = WOFF + 65536
WOOFF = WROFF + 8192
ZOFF = WOOFF + 45056
ZS = 304
LDS_BYTES = ZOFF + 8 * ZS


class Asm:
    def __init__(self):
        self.lines = []

    def __call__(self, s):
        self.lines.append("    " + s)

    def label(self, l):
        self.lines.append(l + ":")

    def c(self, s):
        self.lines.append("    ; " + s)

    def text(self):
        return "\n".join(self.lines) + "\n"


def vr(b, n=1):
    return f"v{b}" if n == 1 else f"v[{b}:{b + n - 1}]"


def sr(b, n=1):
    return f"s{b}" if n == 1 else f"s[{b}:{b + n - 1}]"


S_X, S_W, S_WO, S_OUT, S_DBG, S_WS = 16, 20, 24, 28, 32, 36
S_Q, S_NS, S_M, S_WAVE, S_JB, S_LB, S_B1, S_B2, S_CW = 40, 41, 42, 43, 44, 45, 46, 47, 48
S_T0, S_T1, S_T2, S_T3 = 50, 51, 52, 53
S_MARK = 54
S_SPIN = 55
S_M0A, S_M0B = 56, 58
S_ST = 64


def gen(opt):
    fused = opt.get("fused", True)
    diag = opt.get("diag", False)
    a = Asm()
    stamp_n = [0]

    def stamp(k):
        if diag:
            a(f"s_memrealtime {sr(S_ST + 2 * k, 2)}")
            if k in (2, 3):
                a(f"s_memtime {sr(S_ST + 16 + 2 * (k - 2), 2)}")

    def srd(base, p, nbytes):
        a(f"s_mov_b32 {sr(base)}, {sr(p)}")
        a(f"s_and_b32 {sr(base + 1)}, {sr(p + 1)}, 0xffff")
        a(f"s_mov_b32 {sr(base + 2)}, {nbytes:#x}")
        a(f"s_mov_b32 {sr(base + 3)}, 0x20000")

    def prologue(done):
        a(f"s_cmp_ge_u32 s2, {NWG}")
        a(f"s_cbranch_scc1 {done}")
        a("s_load_dwordx8 s[4:11], s[0:1], 0")
        a("s_load_dwordx4 s[12:15], s[0:1], 32")
        stamp(0)
        a("v_lshrrev_b32 v1, 6, v0")
        a("v_and_b32 v0, 63, v0")
        a(f"s_and_b32 {sr(S_Q)}, s2, 3")
        a(f"v_readfirstlane_b32 {sr(S_WAVE)}, v1")
        a(f"s_lshr_b32 {sr(S_T0)}, s2, 3")
        a(f"s_and_b32 {sr(S_T1)}, s2, 4")
        a(f"s_lshl_b32 {sr(S_T1)}, {sr(S_T1)}, 3")
        a(f"s_add_u32 {sr(S_T0)}, {sr(S_T0)}, {sr(S_T1)}")
        a(f"s_mul_i32 {sr(S_NS)}, {sr(S_T0)}, 37")
        a(f"s_lshr_b32 {sr(S_NS)}, {sr(S_NS)}, 8")
        a(f"s_mul_i32 {sr(S_T1)}, {sr(S_NS)}, 7")
        a(f"s_sub_u32 {sr(S_M)}, {sr(S_T0)}, {sr(S_T1)}")
        a(f"s_lshl_b32 {sr(S_CW)}, {sr(S_NS)}, 2")
        a(f"s_add_u32 {sr(S_CW)}, {sr(S_CW)}, {sr(S_Q)}")
        a(f"s_lshr_b32 {sr(S_T0)}, {sr(S_M)}, 1")
        a(f"s_lshl_b32 {sr(S_T1)}, {sr(S_M)}, 5")
        a(f"s_mul_i32 {sr(S_T2)}, {sr(S_T0)}, 56")
        a(f"s_sub_u32 {sr(S_T1)}, {sr(S_T1)}, {sr(S_T2)}")
        a(f"s_sub_u32 {sr(S_JB)}, 56, {sr(S_T1)}")
        a(f"s_min_u32 {sr(S_JB)}, {sr(S_JB)}, 32")
        a(f"s_mov_b32 {sr(S_MARK)}, {MARK:#x}")

    def seqbase(dst, s, tmp):
        a(f"s_lshr_b32 {sr(dst)}, {sr(s)}, 1")
        a(f"s_mul_i32 {sr(dst)}, {sr(dst)}, 288000")
        a(f"s_and_b32 {sr(tmp)}, {sr(s)}, 1")
        a(f"s_mul_i32 {sr(tmp)}, {sr(tmp)}, 288")
        a(f"s_add_u32 {sr(dst)}, {sr(dst)}, {sr(tmp)}")

    def build_srds():
        a("s_waitcnt lgkmcnt(0)")
        srd(S_X, 4, X_BYTES)
        srd(S_W, 6, W_BYTES)
        srd(S_WO, 8, WO_BYTES)
        srd(S_OUT, 10, OUT_BYTES)
        srd(S_DBG, 12, 256)
        srd(S_WS, 14, (DIAG_OFF + (1 << 20)) if diag else EXCH_BYTES)

    V_AF, V_AG = 100, 104
    V_PA = 108
    V_ZW = 109
    V_ZR = 110
    V_ZR2 = 111
    V_OA = 112
    V_WOA = 113
    V_WOH = 114
    V_WF = 116
    V_WF2 = 136
    V_PF, V_PG = 156, 160
    V_PF2, V_PG2 = 164, 168
    V_D, V_D2 = 172, 176
    V_T = 180
    V_ZB = 192
    V_O, V_O2 = 212, 216
    NVGPR = 224
    W_TASK2 = 4
    W_DT2 = 5

    def p2_prep():
        a.c("phase-2 constants")
        t = V_T
        a(f"v_and_b32 v{t}, 15, v0")
        a(f"v_lshrrev_b32 v{t+1}, 4, v0")
        a(f"v_and_b32 v{t+2}, 1, v0")
        a(f"v_lshlrev_b32 v{t+2}, 4, v{t+2}")
        a(f"v_mov_b32 v{t+3}, 0x3f80")
        a(f"v_lshlrev_b32 v{t+3}, v{t+2}, v{t+3}")
        a(f"v_lshrrev_b32 v{t+4}, 1, v{t}")
        for d in range(4):
            a(f"v_cmp_eq_u32 {sr(S_M0A,2)}, {2*d}, v{t+4}")
            a(f"v_cmp_eq_u32 {sr(S_M0B,2)}, {2*d+1}, v{t+4}")
            a("s_nop 1")
            a(f"v_cndmask_b32 v{V_AF+d}, 0, v{t+3}, {sr(S_M0A,2)}")
            a(f"v_cndmask_b32 v{V_AG+d}, 0, v{t+3}, {sr(S_M0B,2)}")
        a(f"s_mul_i32 {sr(S_T0)}, {sr(S_M)}, 36")
        a(f"s_add_u32 {sr(S_T0)}, {sr(S_T0)}, {sr(S_CW)}")
        a(f"s_mul_i32 {sr(S_T0)}, {sr(S_T0)}, {INBOX}")
        a(f"s_lshl_b32 {sr(S_T1)}, {sr(S_WAVE)}, 8")
        a(f"s_add_u32 {sr(S_T0)}, {sr(S_T0)}, {sr(S_T1)}")
        a(f"v_mul_u32_u24 v{V_PA}, 4608, v{t+1}")
        a(f"v_lshl_add_u32 v{V_PA}, v{t}, 4, v{V_PA}")
        a(f"v_add_u32 v{V_PA}, {sr(S_T0)}, v{V_PA}")
        a(f"v_and_b32 v{t+2}, 3, v{t}")
        a(f"v_lshlrev_b32 v{t+2}, 1, v{t+2}")
        a(f"v_lshrrev_b32 v{t+3}, 1, v{t+1}")
        a(f"v_add_u32 v{t+2}, v{t+2}, v{t+3}")
        a(f"v_mul_u32_u24 v{V_ZW}, {ZS}, v{t+2}")
        a(f"v_lshrrev_b32 v{t+2}, 2, v{t}")
        a(f"v_lshl_add_u32 v{V_ZW}, v{t+2}, 3, v{V_ZW}")
        a(f"v_and_b32 v{t+2}, 1, v{t+1}")
        a(f"v_lshl_add_u32 v{V_ZW}, v{t+2}, 2, v{V_ZW}")
        a(f"s_lshl_b32 {sr(S_T1)}, {sr(S_WAVE)}, 5")
        a(f"s_add_u32 {sr(S_T1)}, {sr(S_T1)}, {ZOFF}")
        a(f"v_add_u32 v{V_ZW}, {sr(S_T1)}, v{V_ZW}")
        a(f"v_and_b32 v{t+2}, 7, v{t}")
        a(f"v_mul_u32_u24 v{t+2}, {ZS}, v{t+2}")
        a(f"v_add_u32 v{t+2}, {ZOFF}, v{t+2}")
        a(f"v_lshl_add_u32 v{V_ZR}, v{t+1}, 4, v{t+2}")
        a(f"v_lshl_add_u32 v{V_ZR2}, v{t+1}, 3, v{t+2}")
        a(f"v_bfe_u32 v{t+2}, v0, 2, 2")
        a(f"v_and_b32 v{t+3}, 3, v0")
        a(f"v_lshlrev_b32 v{t+3}, 3, v{t+3}")
        a(f"s_lshl_b32 {sr(S_T1)}, {sr(S_WAVE)}, 5")
        a(f"s_add_u32 {sr(S_T1)}, {sr(S_T1)}, {WOOFF}")
        a(f"v_add_u32 v{t+3}, {sr(S_T1)}, v{t+3}")
        a(f"v_lshl_add_u32 v{t+4}, v{t+1}, 3, v{t+2}")
        a(f"v_mul_u32_u24 v{t+4}, 288, v{t+4}")
        a(f"v_add_u32 v{V_WOA}, v{t+4}, v{t+3}")
        a(f"v_lshl_add_u32 v{t+4}, v{t+1}, 2, v{t+2}")
        a(f"v_mul_u32_u24 v{t+4}, 288, v{t+4}")
        a(f"v_add_u32 v{V_WOH}, v{t+4}, v{t+3}")
        a(f"s_cmp_lt_u32 {sr(S_CW)}, 32")
        a(f"s_cselect_b64 {sr(S_M0A,2)}, -1, 0")
        a(f"s_and_b32 {sr(S_T0)}, {sr(S_CW)}, 16")
        a(f"s_and_b32 {sr(S_T1)}, {sr(S_CW)}, 3")
        a(f"s_lshl_b32 {sr(S_T1)}, {sr(S_T1)}, 2")
        a(f"s_add_u32 {sr(S_T0)}, {sr(S_T0)}, {sr(S_T1)}")
        a(f"s_and_b32 {sr(S_T1)}, {sr(S_CW)}, 3")
        a(f"s_lshl_b32 {sr(S_T1)}, {sr(S_T1)}, 3")
        a(f"s_cmp_lt_u32 {sr(S_CW)}, 32")
        a(f"s_cselect_b32 {sr(S_T0)}, {sr(S_T0)}, {sr(S_T1)}")
        a(f"s_lshr_b32 {sr(S_T1)}, {sr(S_CW)}, 1")
        a(f"s_and_b32 {sr(S_T1)}, {sr(S_T1)}, 6")
        a(f"s_cmp_lt_u32 {sr(S_CW)}, 32")
        a(f"s_cselect_b32 {sr(S_T1)}, {sr(S_T1)}, 8")
        a(f"s_lshl_b32 {sr(S_T2)}, {sr(S_M)}, 5")
        a(f"s_add_u32 {sr(S_T0)}, {sr(S_T0)}, {sr(S_T2)}")
        a(f"v_lshrrev_b32 v{t+2}, 1, v{t}")
        a(f"v_cndmask_b32 v{t+2}, v{t}, v{t+2}, {sr(S_M0A,2)}")
        a(f"v_and_b32 v{t+3}, 1, v{t}")
        a(f"v_cndmask_b32 v{t+3}, 0, v{t+3}, {sr(S_M0A,2)}")
        a(f"v_add_u32 v{t+2}, {sr(S_T0)}, v{t+2}")
        a(f"v_add_u32 v{t+3}, {sr(S_T1)}, v{t+3}")
        a(f"v_mul_u32_u24 v{t+4}, 1171, v{t+2}")
        a(f"v_lshrrev_b32 v{t+4}, 16, v{t+4}")
        a(f"v_mul_u32_u24 v{t+5}, 56, v{t+4}")
        a(f"v_sub_u32 v{t+2}, v{t+2}, v{t+5}")
        a(f"v_mul_u32_u24 v{t+2}, 9, v{t+2}")
        a(f"v_add_u32 v{t+2}, v{t+2}, v{t+3}")
        a(f"v_lshrrev_b32 v{t+5}, 1, v{t+4}")
        a(f"v_mul_u32_u24 v{t+5}, 288000, v{t+5}")
        a(f"v_and_b32 v{t+4}, 1, v{t+4}")
        a(f"v_mul_u32_u24 v{t+4}, 288, v{t+4}")
        a(f"v_mul_u32_u24 v{t+3}, 576, v{t+2}")
        a(f"v_add3_u32 v{t+3}, v{t+3}, v{t+4}, v{t+5}")
        a(f"v_lshl_add_u32 v{t+3}, v{t+1}, 3, v{t+3}")
        a(f"s_lshl_b32 {sr(S_T1)}, {sr(S_WAVE)}, 5")
        a(f"v_add_u32 v{t+3}, {sr(S_T1)}, v{t+3}")
        a(f"v_mov_b32 v{t+4}, 500")
        a(f"v_cmp_lt_u32 {sr(S_M0A,2)}, v{t+2}, v{t+4}")
        a(f"v_cmp_gt_u32 {sr(S_M0B,2)}, 8, v{t}")
        a(f"v_mov_b32 v{t+4}, {OOB:#x}")
        a(f"s_and_b64 {sr(S_M0A,2)}, {sr(S_M0A,2)}, {sr(S_M0B,2)}")
        a("s_nop 1")
        a(f"v_cndmask_b32 v{V_OA}, v{t+4}, v{t+3}, {sr(S_M0A,2)}")

    LDF = "sc1" if fused else ""

    def poll_issue(pf, pg, extra):
        a(f"buffer_load_dwordx4 {vr(pf,4)}, v{V_PA}, {sr(S_WS,4)}, 0 offen offset:{extra} {LDF}")
        a(f"buffer_load_dwordx4 {vr(pg,4)}, v{V_PA}, {sr(S_WS,4)}, 0 offen offset:{extra+2304} {LDF}")

    def wo_frags(dst, extra):
        for ks in range(4):
            a(f"ds_read_b64_tr_b16 {vr(dst+4*ks,2)}, v{V_WOA} offset:{ks*32*288+extra}")
            a(f"ds_read_b64_tr_b16 {vr(dst+4*ks+2,2)}, v{V_WOA} offset:{ks*32*288+4*288+extra}")
        a(f"ds_read_b64_tr_b16 {vr(dst+16,2)}, v{V_WOH} offset:{128*288+extra}")

    def check(regs_list, lbl_retry):
        first = True
        for r in regs_list:
            a(f"v_cmp_eq_u32 {'vcc' if first else sr(S_M0A,2)}, {sr(S_MARK)}, v{r}")
            if not first:
                a(f"s_or_b64 vcc, vcc, {sr(S_M0A,2)}")
            first = False
        a(f"s_cbranch_vccnz {lbl_retry}")

    LOG2E = 1.4426950408889634

    def gates(pf, pg, d, extra_zw):
        t = V_T
        a(f"v_mfma_f32_16x16x32_bf16 {vr(d,4)}, {vr(V_AF,4)}, {vr(pf,4)}, 0")
        a(f"v_mfma_f32_16x16x32_bf16 {vr(d,4)}, {vr(V_AG,4)}, {vr(pg,4)}, {vr(d,4)}")
        a("s_nop 7")
        a(f"v_mul_f32 v{t}, 0x4038aa3b, v{d}")
        a(f"v_mul_f32 v{t+1}, 0x4038aa3b, v{d+1}")
        a(f"v_mul_f32 v{t+2}, 0xbfb8aa3b, v{d+2}")
        a(f"v_mul_f32 v{t+3}, 0xbfb8aa3b, v{d+3}")
        for k in range(4):
            a(f"v_exp_f32 v{t+k}, v{t+k}")
        a("s_nop 0")
        for k in range(4):
            a(f"v_add_f32 v{t+k}, 1.0, v{t+k}")
        for k in range(4):
            a(f"v_rcp_f32 v{t+k}, v{t+k}")
        a("s_nop 0")
        a(f"v_fma_f32 v{t}, v{t}, -2.0, 1.0")
        a(f"v_fma_f32 v{t+1}, v{t+1}, -2.0, 1.0")
        a(f"v_mul_f32 v{t}, v{t}, v{t+2}")
        a(f"v_mul_f32 v{t+1}, v{t+1}, v{t+3}")
        a(f"v_cvt_pk_bf16_f32 v{t}, v{t}, v{t+1}")
        a(f"ds_write_b32 v{V_ZW}, v{t} offset:{extra_zw}")

    def outproj(wf, o, extra):
        for ks in range(4):
            a(f"v_mfma_f32_16x16x32_bf16 {vr(o,4)}, {vr(wf+4*ks,4)}, {vr(V_ZB+4*ks,4)}, {'0' if ks == 0 else vr(o,4)}")
        a("s_nop 7")
        a(f"v_mfma_f32_16x16x16_bf16 {vr(o,4)}, {vr(wf+16,2)}, {vr(V_ZB+16,2)}, {vr(o,4)}")
        a("s_nop 7")
        a(f"v_cvt_pk_bf16_f32 v{o}, v{o}, v{o+1}")
        a(f"v_cvt_pk_bf16_f32 v{o+1}, v{o+2}, v{o+3}")
        a(f"buffer_store_dwordx2 {vr(o,2)}, v{V_OA}, {sr(S_OUT,4)}, 0 offen offset:{extra}")

    def phase2(pfx):
        t2off = (8 - W_TASK2) * 256
        a(f"s_mov_b32 {sr(S_SPIN)}, 0")
        a(f"s_cmp_eq_u32 {sr(S_WAVE)}, {W_TASK2}")
        a(f"s_cbranch_scc1 {pfx}_two")
        a.label(f"{pfx}_one")
        poll_issue(V_PF, V_PG, 0)
        wo_frags(V_WF, 0)
        a(f"s_cmp_eq_u32 {sr(S_WAVE)}, {W_DT2}")
        a(f"s_cbranch_scc0 {pfx}_one_w")
        wo_frags(V_WF2, (8 - W_DT2) * 32)
        a.label(f"{pfx}_one_w")
        a("s_waitcnt vmcnt(0)")
        if fused:
            check(list(range(V_PF, V_PF + 8)), f"{pfx}_one_retry")
        stamp(5)
        gates(V_PF, V_PG, V_D, 0)
        a(f"s_branch {pfx}_join")
        if fused:
            a.label(f"{pfx}_one_retry")
            a(f"s_add_u32 {sr(S_SPIN)}, {sr(S_SPIN)}, 1")
            a(f"s_cmp_gt_u32 {sr(S_SPIN)}, 0x40000")
            a(f"s_cbranch_scc1 {pfx}_join")
            poll_issue(V_PF, V_PG, 0)
            a(f"s_branch {pfx}_one_w")
        a.label(f"{pfx}_two")
        poll_issue(V_PF, V_PG, 0)
        poll_issue(V_PF2, V_PG2, t2off)
        wo_frags(V_WF, 0)
        a.label(f"{pfx}_two_w")
        a("s_waitcnt vmcnt(0)")
        if fused:
            check(list(range(V_PF, V_PF + 16)), f"{pfx}_two_retry")
        stamp(5)
        gates(V_PF, V_PG, V_D, 0)
        gates(V_PF2, V_PG2, V_D2, (8 - W_TASK2) * 32)
        if fused:
            a(f"s_branch {pfx}_join")
            a.label(f"{pfx}_two_retry")
            a(f"s_add_u32 {sr(S_SPIN)}, {sr(S_SPIN)}, 1")
            a(f"s_cmp_gt_u32 {sr(S_SPIN)}, 0x40000")
            a(f"s_cbranch_scc1 {pfx}_join")
            poll_issue(V_PF, V_PG, 0)
            poll_issue(V_PF2, V_PG2, t2off)
            a(f"s_branch {pfx}_two_w")
        a.label(f"{pfx}_join")
        a("s_waitcnt lgkmcnt(0)")
        a("s_barrier")
        for ks in range(4):
            a(f"ds_read_b128 {vr(V_ZB+4*ks,4)}, v{V_ZR} offset:{ks*64}")
        a(f"ds_read_b64 {vr(V_ZB+16,2)}, v{V_ZR2} offset:256")
        a("s_waitcnt lgkmcnt(0)")
        outproj(V_WF, V_O, 0)
        a(f"s_cmp_eq_u32 {sr(S_WAVE)}, {W_DT2}")
        a(f"s_cbranch_scc0 {pfx}_end")
        outproj(V_WF2, V_O2, (8 - W_DT2) * 32)
        a.label(f"{pfx}_end")
        stamp(6)

    def diag_dump(slot):
        if not diag:
            return
        a("s_waitcnt vmcnt(0)")
        stamp(7)
        amp = opt.get("amp")
        if amp:
            fr, to, kk = amp
            a("s_waitcnt lgkmcnt(0)")
            a(f"s_sub_u32 {sr(S_T0)}, {sr(S_ST+2*to)}, {sr(S_ST+2*fr)}")
            a(f"s_min_u32 {sr(S_T0)}, {sr(S_T0)}, 5000")
            a(f"s_mul_i32 {sr(S_T0)}, {sr(S_T0)}, {kk}")
            a.label(f"L_amp{slot}_{len(a.lines)}")
            lbl = a.lines[-1][:-1]
            a(f"s_memrealtime {sr(S_ST+20,2)}")
            a("s_waitcnt lgkmcnt(0)")
            a(f"s_sub_u32 {sr(S_T1)}, {sr(S_ST+20)}, {sr(S_ST+14)}")
            a(f"s_cmp_lt_u32 {sr(S_T1)}, {sr(S_T0)}")
            a(f"s_cbranch_scc1 {lbl}")
        a(f"s_getreg_b32 {sr(S_T0)}, hwreg(HW_REG_XCC_ID)")
        a(f"s_getreg_b32 {sr(S_T2)}, hwreg(HW_REG_HW_ID)")
        a("s_waitcnt lgkmcnt(0)")
        a(f"v_mov_b32 v2, {sr(S_ST)}")
        for k in range(1, 8):
            a(f"v_writelane_b32 v2, {sr(S_ST+2*k)}, {k}")
        a(f"v_writelane_b32 v2, {sr(S_T0)}, 8")
        a(f"v_writelane_b32 v2, {sr(S_SPIN)}, 9")
        a(f"v_writelane_b32 v2, {sr(S_T2)}, 10")
        a(f"v_writelane_b32 v2, {sr(S_ST+16)}, 11")
        a(f"v_writelane_b32 v2, {sr(S_ST+18)}, 12")
        a(f"s_lshl_b32 {sr(S_T0)}, s2, 3")
        a(f"s_add_u32 {sr(S_T0)}, {sr(S_T0)}, {sr(S_WAVE)}")
        a(f"s_lshl_b32 {sr(S_T0)}, {sr(S_T0)}, 6")
        a(f"s_add_u32 {sr(S_T0)}, {sr(S_T0)}, {DIAG_OFF + slot * (256 << 10)}")
        a(f"v_lshlrev_b32 v3, 2, v0")
        a(f"v_cmp_gt_u32 vcc, 16, v0")
        a(f"v_mov_b32 v4, {OOB:#x}")
        a("s_nop 1")
        a(f"v_cndmask_b32 v3, v4, v3, vcc")
        a(f"buffer_store_dword v2, v3, {sr(S_WS,4)}, {sr(S_T0)} offen")

    def wo_dma(lwreg_shift=None):
        a(f"s_lshl_b32 {sr(S_T0)}, {sr(S_T3)}, 10")
        a(f"v_lshlrev_b32 v10, 4, v0")
        a(f"v_add_u32 v10, {sr(S_T0)}, v10")
        a(f"s_add_u32 {sr(S_T0)}, {sr(S_T0)}, {WOOFF}")
        a(f"s_mov_b32 {sr(S_T1)}, 0")
        for n in range(11):
            a(f"s_mov_b32 m0, {sr(S_T0)}")
            a(f"s_add_u32 {sr(S_T0)}, {sr(S_T0)}, 4096")
            a(f"buffer_load_dwordx4 v10, {sr(S_WO,4)}, {sr(S_T1)} offen lds")
            a(f"s_add_u32 {sr(S_T1)}, {sr(S_T1)}, 4096")

    STAGES = opt.get("stages", [0, 2, 5, 9])

    K1 = NAME + "_kernel" if fused else "conv_kernel"
    a.lines.append(f".globl {K1}\n.p2align 8\n.type {K1},@function")
    a.label(K1)
    prologue("L_done")
    a(f"s_cmp_ge_u32 {sr(S_WAVE)}, 4")
    a("s_cbranch_scc1 L_loader")

    V_XB, V_XR, V_WB, V_WR, V_SA, V_SB = 2, 3, 4, 5, 6, 7
    V_ACC = 12
    V_RX = 48
    a.c("compute wave setup")
    a("v_and_b32 v8, 15, v0")
    a("v_lshrrev_b32 v9, 4, v0")
    a(f"s_lshr_b32 {sr(S_T0)}, {sr(S_WAVE)}, 1")
    a(f"s_and_b32 {sr(S_T1)}, {sr(S_WAVE)}, 1")
    a(f"s_lshl_b32 {sr(S_T2)}, {sr(S_T0)}, 4")
    a(f"v_add_u32 v10, {sr(S_T2)}, v8")
    a(f"v_cmp_le_u32 vcc, {sr(S_JB)}, v10")
    a("v_mul_u32_u24 v11, 9, v10")
    a("v_add_u32 v11, 2, v11")
    a("v_add_u32 v1, 32, v11")
    a("v_cndmask_b32 v11, v11, v1, vcc")
    a("v_mul_u32_u24 v11, 96, v11")
    a(f"v_lshl_add_u32 v{V_XB}, v9, 4, v11")
    a(f"s_mul_i32 {sr(S_T2)}, {sr(S_Q)}, {8*96}")
    a(f"s_sub_u32 {sr(S_T2)}, {24*96+64}, {sr(S_T2)}")
    a(f"v_add_u32 v{V_XR}, {sr(S_T2)}, v11")
    a("v_lshrrev_b32 v1, 1, v9")
    a("v_mul_u32_u24 v1, 96, v1")
    a(f"v_sub_u32 v{V_XR}, v{V_XR}, v1")
    a("v_and_b32 v1, 1, v9")
    a(f"v_lshl_add_u32 v{V_XR}, v1, 4, v{V_XR}")
    a("v_bfe_u32 v10, v0, 2, 2")
    a("v_lshl_add_u32 v10, v9, 3, v10")
    a(f"v_lshlrev_b32 v{V_WB}, 6, v10")
    a("v_bfe_u32 v10, v0, 1, 1")
    a(f"s_lshl_b32 {sr(S_T2)}, {sr(S_T1)}, 1")
    a(f"v_add_u32 v10, {sr(S_T2)}, v10")
    a("v_lshlrev_b32 v1, 1, v1")
    a("v_xor_b32 v10, v10, v1")
    a(f"v_lshl_add_u32 v{V_WB}, v10, 4, v{V_WB}")
    a("v_and_b32 v10, 1, v0")
    a(f"v_lshl_add_u32 v{V_WB}, v10, 3, v{V_WB}")
    a(f"v_add_u32 v{V_WB}, {WOFF}, v{V_WB}")
    a(f"v_add_u32 v{V_WR}, {WROFF - WOFF}, v{V_WB}")
    a(f"s_mul_i32 {sr(S_T2)}, {sr(S_Q)}, 4608")
    a(f"s_lshl_b32 {sr(S_T3)}, {sr(S_NS)}, 9")
    a(f"s_add_u32 {sr(S_T2)}, {sr(S_T2)}, {sr(S_T3)}")
    a(f"s_lshl_b32 {sr(S_T3)}, {sr(S_T1)}, 8")
    a(f"s_add_u32 {sr(S_T2)}, {sr(S_T2)}, {sr(S_T3)}")
    a(f"s_mul_i32 {sr(S_T3)}, {sr(S_M)}, {36*INBOX}")
    a(f"s_add_u32 {sr(S_T2)}, {sr(S_T2)}, {sr(S_T3)}")
    a(f"v_lshlrev_b32 v10, 6, v9")
    a(f"v_add_u32 v10, {sr(S_T2)}, v10")
    a(f"s_mul_i32 {sr(S_T3)}, {sr(S_T0)}, {16*INBOX}")
    a("v_lshrrev_b32 v1, 2, v8")
    a(f"v_mul_u32_u24 v1, {INBOX}, v1")
    a(f"v_add3_u32 v{V_SA}, v10, v1, {sr(S_T3)}")
    a("v_and_b32 v1, 3, v8")
    a(f"v_lshl_add_u32 v{V_SA}, v1, 4, v{V_SA}")
    a(f"s_mul_i32 {sr(S_T3)}, {sr(S_T0)}, {2*INBOX}")
    a(f"s_add_u32 {sr(S_T3)}, {sr(S_T3)}, {32*INBOX}")
    a("v_lshrrev_b32 v1, 3, v8")
    a(f"v_mul_u32_u24 v1, {INBOX}, v1")
    a(f"v_add3_u32 v{V_SB}, v10, v1, {sr(S_T3)}")
    a("v_and_b32 v1, 7, v8")
    a(f"v_lshl_add_u32 v{V_SB}, v1, 3, v{V_SB}")
    if fused:
        p2_prep()
    build_srds()
    stamp(1)
    if diag:
        a("s_waitcnt lgkmcnt(0)")

    mf = []
    for i in range(31):
        for aa in range(8, -1, -1):
            mf.append((aa, ("W", i), ("X", aa - i), i == 0))
    for p in range(4):
        for aa in range(8, -1, -1):
            mf.append((aa, ("WR", p), ("XR", aa - 2 * p), False))
    first_use, last_use = {}, {}
    for idx, (aa, wk, xk, _) in enumerate(mf):
        for k in (wk, xk):
            first_use.setdefault(k, idx)
            last_use[k] = idx
    LEAD = opt.get("lead", 14)
    nst = len(STAGES)

    def stage_of(k):
        if k[0] == "W":
            n = k[1] // 2
            for s, lim in enumerate(STAGES):
                if n <= lim:
                    return s
            return nst
        if k[0] == "WR":
            return nst
        return 0
    order = sorted(first_use, key=lambda k: (first_use[k], k[0][0] != "W"))
    free = list(range(V_RX, V_AF, 4))
    reg = {}
    issued = []
    bar_done = -1
    pend = list(order)
    outstanding = []

    def issue(k):
        nonlocal bar_done
        s = stage_of(k)
        while bar_done < s:
            bar_done += 1
            a("s_barrier")
            if bar_done == 0:
                stamp(2)
                if diag:
                    a("s_waitcnt lgkmcnt(0)")
        r = free.pop(0)
        reg[k] = r
        if k[0] == "W":
            a(f"ds_read_b64_tr_b16 {vr(r,2)}, v{V_WB} offset:{k[1]*2048}")
            a(f"ds_read_b64_tr_b16 {vr(r+2,2)}, v{V_WB} offset:{k[1]*2048+256}")
            outstanding.extend([k, k])
        elif k[0] == "WR":
            a(f"ds_read_b64_tr_b16 {vr(r,2)}, v{V_WR} offset:{k[1]*2048}")
            a(f"ds_read_b64_tr_b16 {vr(r+2,2)}, v{V_WR} offset:{k[1]*2048+256}")
            outstanding.extend([k, k])
        elif k[0] == "X":
            a(f"ds_read_b128 {vr(r,4)}, v{V_XB} offset:{(k[1]+30)*96}")
            outstanding.append(k)
        else:
            a(f"ds_read_b128 {vr(r,4)}, v{V_XR} offset:{(k[1]+6)*96}")
            outstanding.append(k)

    for idx, (aa, wk, xk, first) in enumerate(mf):
        n_iss = 0
        while pend and free and first_use[pend[0]] <= idx + LEAD and len(outstanding) <= 12 and (n_iss < 1 or first_use[pend[0]] <= idx + 1 or idx == 0):
            issue(pend.pop(0))
            n_iss += 1
        assert wk in reg and xk in reg, (idx, wk, xk)
        need = max([i for i, k in enumerate(outstanding) if k in (wk, xk)], default=-1)
        if need >= 0:
            left = len(outstanding) - need - 1
            a(f"s_waitcnt lgkmcnt({left})")
            del outstanding[:need + 1]
        acc = V_ACC + 4 * aa
        a(f"v_mfma_f32_16x16x32_bf16 {vr(acc,4)}, {vr(reg[wk],4)}, {vr(reg[xk],4)}, {'0' if first else vr(acc,4)}")
        for k in (wk, xk):
            if last_use[k] == idx:
                free.append(reg[k])
    assert bar_done == nst and not pend
    stamp(3)
    if fused:
        a("s_barrier")
    STF = "sc1" if fused else ""
    a("s_nop 7")
    t = V_RX
    a(f"v_cvt_pk_bf16_f32 v{t}, v{V_ACC+32}, v{V_ACC+33}")
    a(f"v_cvt_pk_bf16_f32 v{t+1}, v{V_ACC+34}, v{V_ACC+35}")
    a(f"buffer_store_dwordx2 {vr(t,2)}, v{V_SB}, {sr(S_WS,4)}, 0 offen {STF}")
    for ap in (3, 2, 1, 0):
        t = V_RX + 4 + 4 * ap
        for h in range(2):
            b = V_ACC + 4 * (2 * ap + h)
            a(f"v_cvt_pk_bf16_f32 v{t+2*h}, v{b}, v{b+1}")
            a(f"v_cvt_pk_bf16_f32 v{t+2*h+1}, v{b+2}, v{b+3}")
        a(f"s_mov_b32 {sr(S_T0)}, {ap*4*INBOX}")
        a(f"buffer_store_dwordx4 {vr(t,4)}, v{V_SA}, {sr(S_WS,4)}, {sr(S_T0)} offen {STF}")
    stamp(4)
    if fused:
        a("s_branch L_p2")
    else:
        diag_dump(0)
        a("s_endpgm")

    a.label("L_loader")
    a(f"s_sub_u32 {sr(S_T3)}, {sr(S_WAVE)}, 4")
    a(f"s_mul_i32 {sr(S_LB)}, {sr(S_JB)}, 9")
    a(f"s_add_u32 {sr(S_LB)}, {sr(S_LB)}, 32")
    seqbase(S_B1, S_T0, S_T2)
    a(f"s_mul_i32 {sr(S_T1)}, {sr(S_T1)}, {9*576}")
    a(f"s_add_u32 {sr(S_B1)}, {sr(S_B1)}, {sr(S_T1)}")
    a(f"s_sub_u32 {sr(S_B1)}, {sr(S_B1)}, {32*576}")
    a(f"s_add_u32 {sr(S_T0)}, {sr(S_T0)}, 1")
    seqbase(S_B2, S_T0, S_T2)
    a(f"s_add_u32 {sr(S_T1)}, {sr(S_LB)}, 32")
    a(f"s_mul_i32 {sr(S_T1)}, {sr(S_T1)}, 576")
    a(f"s_sub_u32 {sr(S_B2)}, {sr(S_B2)}, {sr(S_T1)}")
    a(f"s_lshl_b32 {sr(S_T0)}, {sr(S_T3)}, 6")
    a(f"v_add_u32 v1, {sr(S_T0)}, v0")
    a(f"s_lshl_b32 {sr(S_T1)}, {sr(S_Q)}, 6")
    a(f"v_mov_b32 v2, {sr(S_T1)}")
    a(f"v_mov_b32 v3, {sr(S_B1)}")
    a(f"v_mov_b32 v4, {sr(S_B2)}")
    a(f"v_mov_b32 v5, {OOB:#x}")
    VXO = 20
    for n in range(3):
        a(f"v_add_u32 v6, {256*n}, v1")
        a("v_mul_u32_u24 v7, 43691, v6")
        a("v_lshrrev_b32 v7, 18, v7")
        a("v_mul_u32_u24 v8, 6, v7")
        a("v_sub_u32 v6, v6, v8")
        a("v_cmp_gt_u32 vcc, 4, v6")
        a("v_mul_u32_u24 v8, 576, v7")
        a("v_lshl_add_u32 v8, v6, 4, v8")
        a("v_mov_b32 v9, 192")
        a("v_cndmask_b32 v9, v9, v2, vcc")
        a("v_add_u32 v8, v8, v9")
        a(f"v_subrev_u32 v7, {sr(S_LB)}, v7")
        for k in range(3):
            if k:
                a("v_add_u32 v7, 128, v7")
                a(f"v_add_u32 v8, {128*576}, v8")
            a(f"v_cmp_gt_i32 {sr(S_M0A,2)}, 0, v7")
            a(f"v_cmp_gt_u32 {sr(S_M0B,2)}, 32, v7")
            a("s_nop 0")
            a(f"v_cndmask_b32 v9, v4, v3, {sr(S_M0A,2)}")
            a("v_add_u32 v9, v9, v8")
            a(f"v_cndmask_b32 v{VXO+n+3*k}, v9, v5, {sr(S_M0B,2)}")
    a(f"s_cmp_eq_u32 {sr(S_T3)}, 0")
    a(f"s_cselect_b64 {sr(S_M0A,2)}, -1, 0")
    a(f"v_cndmask_b32 v{VXO+8}, v5, v{VXO+8}, {sr(S_M0A,2)}")
    a("v_lshrrev_b32 v6, 2, v0")
    a("v_mul_u32_u24 v30, 576, v6")
    a("v_lshrrev_b32 v6, 4, v0")
    a("v_and_b32 v6, 2, v6")
    a("v_and_b32 v7, 3, v0")
    a("v_xor_b32 v6, v6, v7")
    a("v_lshl_add_u32 v30, v6, 4, v30")
    a(f"s_lshl_b32 {sr(S_T0)}, {sr(S_NS)}, 6")
    a(f"v_add_u32 v31, {sr(S_T0)}, v30")
    a(f"s_mul_i32 {sr(S_T1)}, {sr(S_Q)}, {32*576}")
    a(f"v_add_u32 v30, {sr(S_T1)}, v31")
    if fused:
        for k in range(4):
            a(f"v_mov_b32 v{12+k}, {sr(S_MARK)}")
        a(f"s_lshl_b32 {sr(S_T0)}, {sr(S_T3)}, 10")
        a("v_lshlrev_b32 v32, 4, v0")
        a(f"v_add_u32 v32, {sr(S_T0)}, v32")
        for k in range(1, 5):
            a(f"v_add_u32 v{32+k}, {4096*k}, v32")
        a(f"s_cmp_lt_u32 {sr(S_T3)}, 2")
        a(f"s_cselect_b64 {sr(S_M0A,2)}, -1, 0")
        a(f"v_cndmask_b32 v36, v5, v36, {sr(S_M0A,2)}")
        a(f"s_mul_i32 {sr(S_T0)}, {sr(S_M)}, 36")
        a(f"s_add_u32 {sr(S_T1)}, {sr(S_T0)}, {sr(S_CW)}")
        a("v_mov_b32 v37, 1")
        a("v_cmp_eq_u32 vcc, 0, v1")
        a(f"v_mov_b32 v38, {sr(S_T1)}")
        a(f"v_cmp_gt_u32 {sr(S_M0A,2)}, 36, v0")
        a(f"v_cndmask_b32 v38, v5, v38, vcc")
        a(f"v_add_u32 v39, {sr(S_T0)}, v0")
        a(f"v_mov_b32 v6, {sr(S_T0)}")
        a(f"v_cndmask_b32 v39, v6, v39, {sr(S_M0A,2)}")
    build_srds()
    stamp(1)
    ops = []
    a(f"s_lshl_b32 {sr(S_T0)}, {sr(S_T3)}, 10")
    for n in range(9):
        a(f"s_mov_b32 m0, {sr(S_T0)}")
        a(f"s_add_u32 {sr(S_T0)}, {sr(S_T0)}, 4096")
        a(f"buffer_load_dwordx4 v{VXO+n}, {sr(S_X,4)}, 0 offen lds")
        ops.append(("x", n))
    a(f"s_lshr_b32 {sr(S_T1)}, {sr(S_T3)}, 1")
    a(f"s_mul_i32 {sr(S_T1)}, {sr(S_T1)}, 82944")
    a(f"s_and_b32 {sr(S_T2)}, {sr(S_T3)}, 1")
    a(f"s_mul_i32 {sr(S_T2)}, {sr(S_T2)}, 9216")
    a(f"s_add_u32 {sr(S_T1)}, {sr(S_T1)}, {sr(S_T2)}")
    INV_AFTER = opt.get("inv_after", 5)
    for n in range(16):
        a(f"s_mov_b32 m0, {sr(S_T0)}")
        a(f"s_add_u32 {sr(S_T0)}, {sr(S_T0)}, 4096")
        a(f"buffer_load_dwordx4 v30, {sr(S_W,4)}, {sr(S_T1)} offen lds")
        a(f"s_add_u32 {sr(S_T1)}, {sr(S_T1)}, {2*82944}")
        ops.append(("w", n))
        if fused and n == INV_AFTER:
            a(f"s_mul_i32 {sr(S_T2)}, {sr(S_M)}, 36")
            a(f"s_add_u32 {sr(S_T2)}, {sr(S_T2)}, {sr(S_CW)}")
            a(f"s_mul_i32 {sr(S_T2)}, {sr(S_T2)}, {INBOX}")
            for k in range(4):
                a(f"buffer_store_dwordx4 v[12:15], v{32+k}, {sr(S_WS,4)}, {sr(S_T2)} offen sc1")
                ops.append(("inv", k))
            a(f"buffer_store_dwordx4 v[12:15], v36, {sr(S_WS,4)}, {sr(S_T2)} offen sc1")
            ops.append(("inv", 4))
    a(f"s_lshl_b32 {sr(S_T1)}, {sr(S_Q)}, 3")
    a(f"s_add_u32 {sr(S_T1)}, {sr(S_T1)}, {sr(S_T3)}")
    a(f"s_mul_i32 {sr(S_T1)}, {sr(S_T1)}, 82944")
    a(f"s_add_u32 {sr(S_T1)}, {sr(S_T1)}, {128*576}")
    for n in range(2):
        a(f"s_mov_b32 m0, {sr(S_T0)}")
        a(f"s_add_u32 {sr(S_T0)}, {sr(S_T0)}, 4096")
        a(f"buffer_load_dwordx4 v31, {sr(S_W,4)}, {sr(S_T1)} offen lds")
        a(f"s_add_u32 {sr(S_T1)}, {sr(S_T1)}, {4*82944}")
        ops.append(("wr", n))
    if fused:
        wo_dma()
        ops.extend([("wo", n) for n in range(11)])
    stamp(2)
    flagged = not fused
    for s, lim in enumerate(STAGES + [None]):
        tag = ("w", lim) if lim is not None else ("wr", 1)
        pos = ops.index(tag)
        a(f"s_waitcnt vmcnt({len(ops) - pos - 1})")
        a("s_barrier")
        if s == 0:
            stamp(3)
            if fused:
                p2_prep()
        if not flagged and pos > ops.index(("inv", 4)):
            a(f"buffer_store_byte v37, v38, {sr(S_DBG,4)}, 0 offen sc1")
            ops.append(("flag", 0))
            flagged = True
    stamp(4)
    if fused:
        a(f"s_cmp_eq_u32 {sr(S_WAVE)}, 4")
        a("s_cbranch_scc0 L_ld_wait")
        a(f"s_mov_b32 {sr(S_SPIN)}, 0")
        a.label("L_flagpoll")
        a(f"buffer_load_ubyte v2, v39, {sr(S_DBG,4)}, 0 offen sc1")
        a(f"s_add_u32 {sr(S_SPIN)}, {sr(S_SPIN)}, 1")
        a(f"s_cmp_gt_u32 {sr(S_SPIN)}, 0x40000")
        a("s_cbranch_scc1 L_ld_wait")
        a("s_waitcnt vmcnt(0)")
        a("v_cmp_eq_u32 vcc, 0, v2")
        a("s_cbranch_vccnz L_flagpoll")
        a.label("L_ld_wait")
        a("s_waitcnt vmcnt(0)")
        a("s_barrier")
        a.label("L_p2")
        phase2("P2")
        diag_dump(0)
    else:
        diag_dump(0)
    a.label("L_done")
    a("s_endpgm")

    kernels = [(K1, NVGPR)]
    if not fused:
        K2 = "proj_kernel"
        a.lines.append(f".globl {K2}\n.p2align 8\n.type {K2},@function")
        a.label(K2)
        prologue("L2_done")
        p2_prep()
        build_srds()
        stamp(1)
        a(f"s_cmp_lt_u32 {sr(S_WAVE)}, 4")
        a("s_cbranch_scc1 L2_go")
        a(f"s_sub_u32 {sr(S_T3)}, {sr(S_WAVE)}, 4")
        wo_dma()
        a("s_waitcnt vmcnt(0)")
        a.label("L2_go")
        stamp(2)
        a("s_barrier")
        stamp(3)
        phase2("Q2")
        diag_dump(1)
        a.label("L2_done")
        a("s_endpgm")
        kernels.append((K2, NVGPR))

    head = open("cdna_kernels/" + NAME + ".s.ref").read().split("; Override")[0]
    if fused:
        head += f"; @launch grid=({NWG},1,1) block=(512,1,1) lds={LDS_BYTES}\n"
    else:
        for k, _ in kernels:
            head += f"; @launch kernel={k} grid=({NWG},1,1) block=(512,1,1) lds={LDS_BYTES}\n"
    head += '.amdgcn_target "amdgcn-amd-amdhsa--gfx950"\n.text\n'
    tail = '.section .rodata,"a"\n'
    for k, nv in kernels:
        tail += f""".p2align 6
.amdhsa_kernel {k}
  .amdhsa_next_free_vgpr {nv}
  .amdhsa_next_free_sgpr 102
  .amdhsa_accum_offset {nv}
  .amdhsa_group_segment_fixed_size 0
  .amdhsa_kernarg_size 48
  .amdhsa_user_sgpr_count 2
  .amdhsa_user_sgpr_kernarg_segment_ptr 1
  .amdhsa_system_sgpr_workgroup_id_x 1
.end_amdhsa_kernel
"""
    return head + a.text() + tail


if __name__ == "__main__":
    out = sys.argv[1]
    opt = {}
    for kv in sys.argv[2:]:
        k, v = kv.split("=")
        opt[k] = eval(v)
    open(out, "w").write(gen(opt))
```

```python
import sys

NAME = "standalone__autoregressive_conv_wavenet__speech"

X_BYTES = 2 * 1000 * 144 * 2
W_BYTES = 31 * 144 * 288 * 2
WO_BYTES = 144 * 144 * 2
OUT_BYTES = X_BYTES
NWG = 252
SUMS = 18432
INBOX = SUMS + 4608
EXCH_BYTES = 7 * 36 * INBOX
WS_BYTES = EXCH_BYTES
DIAG_OFF = 8 << 20
OOB = 0x40000000
SPINMAX = 0x40000

XMOFF = 0
WOFF = 33792
WROFF = WOFF + 65536
WOOFF = WROFF + 8192
ZOFF = WOOFF + 45056
ZS = 304
PROG = ZOFF + 8 * ZS
LDS_BYTES = PROG + 32 + 256


class Asm:
    def __init__(self):
        self.lines = []
        self.n = 0

    def __call__(self, s):
        self.lines.append("    " + s)
        self.n += 1

    def label(self, l):
        self.lines.append(l + ":")

    def c(self, s):
        self.lines.append("    ; " + s)

    def text(self):
        return "\n".join(self.lines) + "\n"


def vr(b, n=1):
    return f"v{b}" if n == 1 else f"v[{b}:{b + n - 1}]"


def sr(b, n=1):
    return f"s{b}" if n == 1 else f"s[{b}:{b + n - 1}]"


S_X, S_W, S_WO, S_OUT, S_DBG, S_WS = 16, 20, 24, 28, 32, 36
S_Q, S_NS, S_M, S_WAVE, S_JB, S_B1, S_XO, S_DEL, S_CW, S_LW = 40, 41, 42, 43, 44, 45, 46, 47, 48, 49
S_T0, S_T1, S_T2, S_T3 = 50, 51, 52, 53
S_MARK, S_SPIN = 54, 55
S_M0A, S_M0B = 56, 58
S_LD, S_WOF, S_E, S_OOB = 60, 61, 62, 63
S_ST = 64
S_XB = 88
S_C0, S_CR, S_SIDE = 98, 99, 100
S_P2D, S_P2C, S_THR = 96, 97, 101

V_ACC = 12
V_POOL0, V_POOL1 = 48, 128
V_F, V_XB, V_FA2 = 128, 129, 130
V_CV, V_CV2 = 132, 136
V_AF, V_AG = 140, 144
V_PA, V_ZW, V_ZR, V_ZR2, V_OA, V_WOA, V_WOH, V_PC = 148, 149, 150, 151, 152, 153, 154, 155
V_T = 156
V_ZW2, V_HA, V_HT = 132, 133, 134
V_DUMMY = 167
V_WF, V_PF, V_D, V_ZB, V_O, V_CK = 48, 68, 84, 96, 116, 92
NVGPR = 168


def gen(opt):
    diag = opt.get("diag", False)
    TAIL = opt.get("tail", 9)
    T0 = 31 - TAIL
    DEPTH = opt.get("depth", 5)
    LEAD = opt.get("lead", 14)
    LEADF = opt.get("leadf", 7)
    LEADC = opt.get("leadc", 7)
    a = Asm()

    def stamp(k):
        if diag:
            a(f"s_memrealtime {sr(S_ST + 2 * k, 2)}")
            if k in (2, 3):
                a(f"s_memtime {sr(S_ST + 16 + 2 * (k - 2), 2)}")

    XST = [4, 6, 8, 10, 12, 14, 88, 90, 92, 94]

    def xstamp(k):
        if diag and k < len(XST):
            a(f"s_memrealtime {sr(XST[k], 2)}")

    def srd(base, p):
        a(f"s_mov_b32 {sr(base)}, {sr(p)}")
        a(f"s_and_b32 {sr(base + 1)}, {sr(p + 1)}, 0xffff")

    def p2_prep_gate():
        a.c("phase-2 constants: summing and gating (helper waves; task = wave-4 and wave+1)")
        t = V_T
        a(f"v_and_b32 v{t}, 15, v0")
        a(f"v_lshrrev_b32 v{t+1}, 4, v0")
        a(f"v_and_b32 v{t+2}, 1, v0")
        a(f"v_lshlrev_b32 v{t+2}, 4, v{t+2}")
        a(f"v_mov_b32 v{t+3}, 0x3f80")
        a(f"v_lshlrev_b32 v{t+3}, v{t+2}, v{t+3}")
        a(f"v_lshrrev_b32 v{t+4}, 1, v{t}")
        for d in range(4):
            a(f"v_cmp_eq_u32 {sr(S_M0A,2)}, {2*d}, v{t+4}")
            a(f"v_cmp_eq_u32 {sr(S_M0B,2)}, {2*d+1}, v{t+4}")
            a("s_nop 1")
            a(f"v_cndmask_b32 v{V_AF+d}, 0, v{t+3}, {sr(S_M0A,2)}")
            a(f"v_cndmask_b32 v{V_AG+d}, 0, v{t+3}, {sr(S_M0B,2)}")
        a(f"s_mul_i32 {sr(S_T0)}, {sr(S_M)}, 36")
        a(f"s_add_u32 {sr(S_T0)}, {sr(S_T0)}, {sr(S_CW)}")
        a(f"s_mul_i32 {sr(S_T0)}, {sr(S_T0)}, {INBOX}")
        a(f"s_sub_u32 {sr(S_T3)}, {sr(S_WAVE)}, 4")
        a(f"s_lshl_b32 {sr(S_T1)}, {sr(S_T3)}, 8")
        a(f"s_add_u32 {sr(S_T1)}, {sr(S_T1)}, {sr(S_T0)}")
        a(f"v_mul_u32_u24 v{V_PA}, 4608, v{t+1}")
        a(f"v_lshl_add_u32 v{V_PA}, v{t}, 4, v{V_PA}")
        a(f"v_add_u32 v{V_PA}, {sr(S_T1)}, v{V_PA}")
        a(f"s_lshl_b32 {sr(S_T1)}, {sr(S_T3)}, 6")
        a(f"s_add_u32 {sr(S_T1)}, {sr(S_T1)}, {sr(S_T0)}")
        a(f"s_add_u32 {sr(S_T1)}, {sr(S_T1)}, {SUMS}")
        a(f"v_mul_u32_u24 v{V_PC}, 1152, v{t+1}")
        a(f"v_and_b32 v{t+2}, 3, v{t}")
        a(f"v_lshl_add_u32 v{V_PC}, v{t+2}, 4, v{V_PC}")
        a(f"v_and_b32 v{t+3}, 12, v{t}")
        a(f"v_add3_u32 v{V_PC}, v{V_PC}, v{t+3}, {sr(S_T1)}")
        a(f"v_lshlrev_b32 v{t+2}, 1, v{t+2}")
        a(f"v_lshrrev_b32 v{t+3}, 1, v{t+1}")
        a(f"v_add_u32 v{t+2}, v{t+2}, v{t+3}")
        a(f"v_mul_u32_u24 v{V_ZW}, {ZS}, v{t+2}")
        a(f"v_lshrrev_b32 v{t+2}, 2, v{t}")
        a(f"v_lshl_add_u32 v{V_ZW}, v{t+2}, 3, v{V_ZW}")
        a(f"v_and_b32 v{t+2}, 1, v{t+1}")
        a(f"v_lshl_add_u32 v{V_ZW}, v{t+2}, 2, v{V_ZW}")
        a(f"s_lshl_b32 {sr(S_T1)}, {sr(S_T3)}, 5")
        a(f"s_add_u32 {sr(S_T1)}, {sr(S_T1)}, {ZOFF}")
        a(f"v_add_u32 v{V_ZW}, {sr(S_T1)}, v{V_ZW}")
        a(f"s_cmp_lt_u32 {sr(S_WAVE)}, 8")
        a(f"s_cselect_b32 {sr(S_P2D)}, 1280, 0")
        a(f"s_cselect_b32 {sr(S_P2C)}, 320, 0")
        a(f"s_cselect_b32 {sr(S_T1)}, 160, 0")
        a(f"v_add_u32 v{V_ZW2}, {sr(S_T1)}, v{V_ZW}")
        a(f"s_bfe_u32 {sr(S_T1)}, {sr(S_CW)}, 0x20002")
        a(f"s_sub_u32 {sr(S_T1)}, 5, {sr(S_T1)}")
        a(f"s_cmp_lt_u32 {sr(S_CW)}, 32")
        a(f"s_cselect_b32 {sr(S_T1)}, {sr(S_T1)}, 1")
        a(f"s_lshl_b32 {sr(S_THR)}, {sr(S_T1)}, 2")
        a(f"v_min_u32 v{t+2}, 5, v0")
        a(f"v_lshlrev_b32 v{V_HA}, 2, v{t+2}")
        a(f"v_add_u32 v{V_HA}, {PROG}, v{V_HA}")
        a(f"v_mov_b32 v{V_HT}, {sr(S_THR)}")
        a(f"v_cmp_gt_u32 {sr(S_M0A,2)}, 4, v0")
        a(f"v_cmp_eq_u32 {sr(S_M0B,2)}, 4, v0")
        a("s_nop 1")
        a(f"v_cndmask_b32 v{V_HT}, v{V_HT}, {WOST}, {sr(S_M0A,2)}")
        a(f"v_cndmask_b32 v{V_HT}, v{V_HT}, 1, {sr(S_M0B,2)}")

    def p2_prep_proj():
        a.c("phase-2 constants: projection (all waves; d tile = wave)")
        t = V_T
        a(f"v_and_b32 v{t}, 15, v0")
        a(f"v_lshrrev_b32 v{t+1}, 4, v0")
        a(f"s_lshl_b32 {sr(S_T3)}, {sr(S_WAVE)}, 5")
        a(f"v_and_b32 v{t+2}, 7, v{t}")
        a(f"v_mul_u32_u24 v{t+2}, {ZS}, v{t+2}")
        a(f"v_add_u32 v{t+2}, {ZOFF}, v{t+2}")
        a(f"v_lshl_add_u32 v{V_ZR}, v{t+1}, 4, v{t+2}")
        a(f"v_lshl_add_u32 v{V_ZR2}, v{t+1}, 3, v{t+2}")
        a(f"v_bfe_u32 v{t+2}, v0, 2, 2")
        a(f"v_and_b32 v{t+3}, 3, v0")
        a(f"v_lshlrev_b32 v{t+3}, 3, v{t+3}")
        a(f"s_add_u32 {sr(S_T1)}, {sr(S_T3)}, {WOOFF}")
        a(f"v_add_u32 v{t+3}, {sr(S_T1)}, v{t+3}")
        a(f"v_lshl_add_u32 v{t+4}, v{t+1}, 3, v{t+2}")
        a(f"v_mul_u32_u24 v{t+4}, 288, v{t+4}")
        a(f"v_add_u32 v{V_WOA}, v{t+4}, v{t+3}")
        a(f"v_lshl_add_u32 v{t+4}, v{t+1}, 2, v{t+2}")
        a(f"v_mul_u32_u24 v{t+4}, 288, v{t+4}")
        a(f"v_add_u32 v{V_WOH}, v{t+4}, v{t+3}")
        a(f"s_and_b32 {sr(S_T0)}, {sr(S_CW)}, 16")
        a(f"s_and_b32 {sr(S_T1)}, {sr(S_CW)}, 3")
        a(f"s_lshl_b32 {sr(S_T2)}, {sr(S_T1)}, 2")
        a(f"s_add_u32 {sr(S_T0)}, {sr(S_T0)}, {sr(S_T2)}")
        a(f"s_lshl_b32 {sr(S_T1)}, {sr(S_T1)}, 3")
        a(f"s_lshr_b32 {sr(S_T2)}, {sr(S_CW)}, 1")
        a(f"s_and_b32 {sr(S_T2)}, {sr(S_T2)}, 6")
        a(f"s_cmp_lt_u32 {sr(S_CW)}, 32")
        a(f"s_cselect_b64 {sr(S_M0A,2)}, -1, 0")
        a(f"s_cselect_b32 {sr(S_T0)}, {sr(S_T0)}, {sr(S_T1)}")
        a(f"s_cselect_b32 {sr(S_T1)}, {sr(S_T2)}, 8")
        a(f"s_lshl_b32 {sr(S_T2)}, {sr(S_M)}, 5")
        a(f"s_add_u32 {sr(S_T0)}, {sr(S_T0)}, {sr(S_T2)}")
        a(f"v_lshrrev_b32 v{t+2}, 1, v{t}")
        a(f"v_cndmask_b32 v{t+2}, v{t}, v{t+2}, {sr(S_M0A,2)}")
        a(f"v_and_b32 v{t+3}, 1, v{t}")
        a(f"v_cndmask_b32 v{t+3}, 0, v{t+3}, {sr(S_M0A,2)}")
        a(f"v_add_u32 v{t+2}, {sr(S_T0)}, v{t+2}")
        a(f"v_add_u32 v{t+3}, {sr(S_T1)}, v{t+3}")
        a(f"v_mul_u32_u24 v{t+4}, 1171, v{t+2}")
        a(f"v_lshrrev_b32 v{t+4}, 16, v{t+4}")
        a(f"v_mul_u32_u24 v{t+5}, 56, v{t+4}")
        a(f"v_sub_u32 v{t+2}, v{t+2}, v{t+5}")
        a(f"v_mul_u32_u24 v{t+2}, 9, v{t+2}")
        a(f"v_add_u32 v{t+2}, v{t+2}, v{t+3}")
        a(f"v_lshrrev_b32 v{t+5}, 1, v{t+4}")
        a(f"v_mul_u32_u24 v{t+5}, 288000, v{t+5}")
        a(f"v_and_b32 v{t+4}, 1, v{t+4}")
        a(f"v_mul_u32_u24 v{t+4}, 288, v{t+4}")
        a(f"v_mul_u32_u24 v{t+3}, 576, v{t+2}")
        a(f"v_add3_u32 v{t+3}, v{t+3}, v{t+4}, v{t+5}")
        a(f"v_lshl_add_u32 v{t+3}, v{t+1}, 3, v{t+3}")
        a(f"v_add_u32 v{t+3}, {sr(S_T3)}, v{t+3}")
        a(f"v_mov_b32 v{t+4}, 500")
        a(f"v_cmp_lt_u32 {sr(S_M0A,2)}, v{t+2}, v{t+4}")
        a(f"v_cmp_gt_u32 {sr(S_M0B,2)}, 8, v{t}")
        a(f"v_mov_b32 v{t+4}, {OOB:#x}")
        a(f"s_and_b64 {sr(S_M0A,2)}, {sr(S_M0A,2)}, {sr(S_M0B,2)}")
        a("s_nop 1")
        a(f"v_cndmask_b32 v{V_OA}, v{t+4}, v{t+3}, {sr(S_M0A,2)}")

    def wo_frags():
        for ks in range(4):
            a(f"ds_read_b64_tr_b16 {vr(V_WF+4*ks,2)}, v{V_WOA} offset:{ks*32*288}")
            a(f"ds_read_b64_tr_b16 {vr(V_WF+4*ks+2,2)}, v{V_WOA} offset:{ks*32*288+4*288}")
        a(f"ds_read_b64_tr_b16 {vr(V_WF+16,2)}, v{V_WOH} offset:{128*288}")

    pads = []

    def pad():
        k = len(pads)
        pads.append(k)
        a.label(f"L_pad{k}")
        a(f"s_cbranch_execz L_pad{k+1}")

    def phase2():
        start = len(a.lines)
        t = V_T
        a.label("L_help")
        a(f"ds_read_b32 v{V_F}, v{V_HA}")
        a("s_sleep 1")
        a("s_waitcnt lgkmcnt(0)")
        a(f"v_cmp_gt_u32 vcc, v{V_HT}, v{V_F}")
        a("s_cbranch_vccnz L_help")
        xstamp(7)
        a(f"v_readlane_b32 {sr(S_MARK)}, v{V_F}, 4")
        wo_frags()
        a(f"s_mov_b32 {sr(S_SPIN)}, 0")
        a(f"s_sleep {opt.get('poll_sleep', 16)}")
        a.label("P2_retry")
        for k in range(2):
            so = sr(S_P2D) if k else "0"
            a(f"buffer_load_dwordx4 {vr(V_PF+8*k,4)}, v{V_PA}, {sr(S_WS,4)}, {so} offen sc1")
            a(f"buffer_load_dwordx4 {vr(V_PF+8*k+4,4)}, v{V_PA}, {sr(S_WS,4)}, {so} offen offset:2304 sc1")
        for k in range(2):
            so = sr(S_P2C) if k else "0"
            a(f"buffer_load_dword v{V_CK+2*k}, v{V_PC}, {sr(S_WS,4)}, {so} offen sc1")
            a(f"buffer_load_dword v{V_CK+2*k+1}, v{V_PC}, {sr(S_WS,4)}, {so} offen offset:576 sc1")
        a(f"s_add_u32 {sr(S_SPIN)}, {sr(S_SPIN)}, 1")
        a(f"s_cmp_lt_u32 {sr(S_SPIN)}, {SPINMAX}")
        a(f"s_cselect_b64 {sr(S_M0B,2)}, -1, 0")
        for k in range(2):
            p, d = V_PF + 8 * k, V_D + 4 * k
            a(f"s_waitcnt vmcnt({6 - 2*k})")
            a(f"v_mfma_f32_16x16x32_bf16 {vr(d,4)}, {vr(V_AF,4)}, {vr(p,4)}, 0")
            a(f"v_mfma_f32_16x16x32_bf16 {vr(d,4)}, {vr(V_AG,4)}, {vr(p+4,4)}, {vr(d,4)}")
            for h in range(2):
                a(f"v_add3_u32 v{t+2*k+h}, v{p+4*h}, v{p+4*h+1}, v{p+4*h+2}")
            for h in range(2):
                a(f"v_add3_u32 v{t+2*k+h}, v{t+2*k+h}, v{p+4*h+3}, {sr(S_MARK)}")
        a("s_waitcnt vmcnt(0)")
        for k in range(4):
            a(f"v_cmp_ne_u32 {'vcc' if k == 0 else sr(S_M0A,2)}, v{t+k}, v{V_CK+k}")
            if k:
                a(f"s_or_b64 vcc, vcc, {sr(S_M0A,2)}")
        a(f"s_and_b64 vcc, vcc, {sr(S_M0B,2)}")
        a("s_cbranch_vccnz P2_retry")
        stamp(5)
        for k in range(8):
            a(f"v_mul_f32 v{t+k}, {'0x4038aa3b' if (k & 2) == 0 else '0xbfb8aa3b'}, v{V_D+k}")
        for k in range(8):
            a(f"v_exp_f32 v{t+k}, v{t+k}")
        for k in range(8):
            a(f"v_add_f32 v{t+k}, 1.0, v{t+k}")
        for k in range(8):
            a(f"v_rcp_f32 v{t+k}, v{t+k}")
        for k in (0, 1, 4, 5):
            a(f"v_fma_f32 v{t+k}, v{t+k}, -2.0, 1.0")
        for k in (0, 1, 4, 5):
            a(f"v_mul_f32 v{t+k}, v{t+k}, v{t+k+2}")
        a(f"v_cvt_pk_bf16_f32 v{t}, v{t}, v{t+1}")
        a(f"v_cvt_pk_bf16_f32 v{t+4}, v{t+4}, v{t+5}")
        a(f"ds_write_b32 v{V_ZW}, v{t}")
        a(f"ds_write_b32 v{V_ZW2}, v{t+4}")
        a.label("L_p2")
        a("s_waitcnt lgkmcnt(0)")
        a("s_barrier")
        xstamp(8)
        for ks in range(4):
            a(f"ds_read_b128 {vr(V_ZB+4*ks,4)}, v{V_ZR} offset:{ks*64}")
        a(f"ds_read_b64 {vr(V_ZB+16,2)}, v{V_ZR2} offset:256")
        o, o2 = V_O, V_O + 4
        a("s_waitcnt lgkmcnt(4)" if not diag else "s_waitcnt lgkmcnt(0)")
        a(f"v_mfma_f32_16x16x32_bf16 {vr(o,4)}, {vr(V_WF,4)}, {vr(V_ZB,4)}, 0")
        for ks in range(1, 4):
            a(f"s_waitcnt lgkmcnt({4-ks})")
            a(f"v_mfma_f32_16x16x32_bf16 {vr(o,4)}, {vr(V_WF+4*ks,4)}, {vr(V_ZB+4*ks,4)}, {vr(o,4)}")
        a("s_waitcnt lgkmcnt(0)")
        a(f"v_mfma_f32_16x16x16_bf16 {vr(o2,4)}, {vr(V_WF+16,2)}, {vr(V_ZB+16,2)}, 0")
        a("s_nop 7")
        for k in range(4):
            a(f"v_add_f32 v{o+k}, v{o+k}, v{o2+k}")
        a(f"v_cvt_pk_bf16_f32 v{o}, v{o}, v{o+1}")
        a(f"v_cvt_pk_bf16_f32 v{o+1}, v{o+2}, v{o+3}")
        a(f"buffer_store_dwordx2 {vr(o,2)}, v{V_OA}, {sr(S_OUT,4)}, 0 offen")
        if opt.get("pads", True):
            body = a.lines[start:]
            del a.lines[start:]
            PADN = opt.get("padn", 14)
            cnt = PADN
            for ln in body:
                is_ins = ln.startswith("    ") and not ln.startswith("    ;")
                if is_ins and cnt >= PADN and not ln.strip().startswith(("s_cbranch", "s_cselect")):
                    pad()
                    cnt = 0
                a.lines.append(ln)
                cnt += is_ins
            a.label(f"L_pad{len(pads)}")
            a("s_cbranch_execz L_warm_done")
        stamp(6)

    def diag_dump():
        if not diag:
            return
        a("s_waitcnt vmcnt(0)")
        stamp(7)
        amp = opt.get("amp")
        if amp:
            fr, to, kk = amp
            a("s_waitcnt lgkmcnt(0)")
            a(f"s_sub_u32 {sr(S_T0)}, {sr(S_ST+2*to)}, {sr(S_ST+2*fr)}")
            a(f"s_min_u32 {sr(S_T0)}, {sr(S_T0)}, 5000")
            a(f"s_mul_i32 {sr(S_T0)}, {sr(S_T0)}, {kk}")
            a.label("L_amp")
            a(f"s_memrealtime {sr(S_ST+20,2)}")
            a("s_waitcnt lgkmcnt(0)")
            a(f"s_sub_u32 {sr(S_T1)}, {sr(S_ST+20)}, {sr(S_ST+14)}")
            a(f"s_cmp_lt_u32 {sr(S_T1)}, {sr(S_T0)}")
            a("s_cbranch_scc1 L_amp")
        a(f"s_getreg_b32 {sr(S_T0)}, hwreg(HW_REG_XCC_ID)")
        a("s_waitcnt lgkmcnt(0)")
        a(f"v_mov_b32 v2, {sr(S_ST)}")
        for k in range(1, 8):
            a(f"v_writelane_b32 v2, {sr(S_ST+2*k)}, {k}")
        a(f"v_writelane_b32 v2, {sr(S_T0)}, 8")
        a(f"v_writelane_b32 v2, {sr(S_SPIN)}, 9")
        a(f"v_writelane_b32 v2, {sr(S_CW)}, 10")
        a(f"v_writelane_b32 v2, {sr(S_ST+16)}, 11")
        a(f"v_writelane_b32 v2, {sr(S_ST+18)}, 12")
        for k, r in enumerate(XST):
            a(f"v_writelane_b32 v2, {sr(r)}, {16+k}")
        a(f"s_lshl_b32 {sr(S_T0)}, s2, 4")
        a(f"s_add_u32 {sr(S_T0)}, {sr(S_T0)}, {sr(S_WAVE)}")
        a(f"s_lshl_b32 {sr(S_T0)}, {sr(S_T0)}, 7")
        a(f"s_add_u32 {sr(S_T0)}, {sr(S_T0)}, {DIAG_OFF}")
        a("v_lshlrev_b32 v3, 2, v0")
        a("v_cmp_gt_u32 vcc, 32, v0")
        a(f"v_mov_b32 v4, {OOB:#x}")
        a("s_nop 1")
        a("v_cndmask_b32 v3, v4, v3, vcc")
        a(f"buffer_store_dword v2, v3, {sr(S_WS,4)}, {sr(S_T0)} offen")

    NW0 = opt.get("nw0", 1)
    PF = opt.get("pf", False)
    PF2_AFTER = opt.get("pf2_after", 4)
    XF = opt.get("xfirst", 1)
    ops = [("xm", n) for n in range(XF)] + [("wr", 0), ("wr", 1)] + [("w", n) for n in range(NW0)]
    if PF and opt.get("pf1", False):
        ops.append(("pf", 1))
    ops += [("xm", n) for n in range(XF, 11)]
    if PF and PF2_AFTER < NW0:
        ops.append(("pf", 2))
    for n in range(NW0, 16):
        ops.append(("w", n))
        if PF and n == PF2_AFTER:
            ops.append(("pf", 2))
    ops += [("wo", n) for n in range(11)]
    default_stages = [("xm", 10)] + [("w", n) for n in (1, 2, 4, 6, 8, 10, 15) if n >= NW0]
    stage_ends = opt.get("stages", default_stages)
    stage_ends = stage_ends + [("wo", 10)]
    WOST = len(stage_ends) - 1
    FINAL = len(stage_ends)

    def stage_of_tag(tag):
        pos = ops.index(tag)
        for s, e in enumerate(stage_ends):
            if pos <= ops.index(e):
                return s
        raise ValueError(tag)

    K1 = NAME + "_kernel"
    a.lines.append(f".globl {K1}\n.p2align 8\n.type {K1},@function")
    a.label(K1)
    a(f"s_cmp_ge_u32 s2, {NWG}")
    a("s_cbranch_scc1 L_done")
    a("s_load_dwordx8 s[4:11], s[0:1], 0")
    a("s_load_dwordx4 s[12:15], s[0:1], 32")
    stamp(0)
    a("v_lshrrev_b32 v1, 6, v0")
    a("v_and_b32 v0, 63, v0")
    a(f"s_and_b32 {sr(S_Q)}, s2, 3")
    a(f"v_readfirstlane_b32 {sr(S_WAVE)}, v1")
    if opt.get("pfc", True):
        a(f"s_cmp_lg_u32 {sr(S_WAVE)}, 8")
        a("s_cbranch_scc1 L_nopfc")
        a(f"s_getpc_b64 {sr(S_M0A,2)}")
        a.label("L_pc")
        a(f"s_lshr_b32 {sr(S_LD)}, s2, 3")
        a(f"s_mul_i32 {sr(S_LD)}, {sr(S_LD)}, 384")
        a("v_min_u32 v2, 2, v0")
        a("v_lshlrev_b32 v2, 7, v2")
        a(f"v_add_u32 v2, {sr(S_LD)}, v2")
        a("v_min_u32 v2, L_end-L_pc-4, v2")
        a(f"global_load_dword v{V_DUMMY}, v2, {sr(S_M0A,2)}")
        a.label("L_nopfc")
    a(f"s_lshr_b32 {sr(S_T0)}, s2, 3")
    a(f"s_and_b32 {sr(S_T1)}, s2, 4")
    a(f"s_lshl_b32 {sr(S_T1)}, {sr(S_T1)}, 3")
    a(f"s_add_u32 {sr(S_T0)}, {sr(S_T0)}, {sr(S_T1)}")
    a(f"s_mul_i32 {sr(S_M)}, {sr(S_T0)}, 57")
    a(f"s_lshr_b32 {sr(S_M)}, {sr(S_M)}, 9")
    a(f"s_mul_i32 {sr(S_T1)}, {sr(S_M)}, 9")
    a(f"s_sub_u32 {sr(S_NS)}, {sr(S_T0)}, {sr(S_T1)}")
    a(f"s_lshl_b32 {sr(S_CW)}, {sr(S_NS)}, 2")
    a(f"s_add_u32 {sr(S_CW)}, {sr(S_CW)}, {sr(S_Q)}")
    a(f"s_lshr_b32 {sr(S_T0)}, {sr(S_M)}, 1")
    a(f"s_lshl_b32 {sr(S_T1)}, {sr(S_M)}, 5")
    a(f"s_mul_i32 {sr(S_T2)}, {sr(S_T0)}, 56")
    a(f"s_sub_u32 {sr(S_T1)}, {sr(S_T1)}, {sr(S_T2)}")
    a(f"s_sub_u32 {sr(S_JB)}, 56, {sr(S_T1)}")
    a(f"s_min_u32 {sr(S_JB)}, {sr(S_JB)}, 32")
    a(f"s_lshr_b32 {sr(S_T2)}, {sr(S_Q)}, 1")
    a(f"s_mul_i32 {sr(S_CR)}, {sr(S_T2)}, 72")
    a(f"s_and_b32 {sr(S_SIDE)}, {sr(S_Q)}, 1")
    a(f"s_mul_i32 {sr(S_C0)}, {sr(S_SIDE)}, 40")
    a(f"s_add_u32 {sr(S_C0)}, {sr(S_C0)}, {sr(S_CR)}")
    a(f"s_add_u32 {sr(S_CR)}, {sr(S_CR)}, 32")
    a(f"s_mov_b32 {sr(S_OOB)}, {OOB:#x}")
    for base, n in ((S_X, X_BYTES), (S_W, W_BYTES), (S_WO, WO_BYTES), (S_OUT, OUT_BYTES), (S_DBG, 256),
                    (S_WS, (DIAG_OFF + (1 << 20)) if diag else WS_BYTES)):
        a(f"s_mov_b32 {sr(base + 2)}, {n:#x}")
        a(f"s_mov_b32 {sr(base + 3)}, 0x20000")
    a(f"s_cmp_lt_u32 {sr(S_WAVE)}, 4")
    a("s_cbranch_scc1 L_compute")
    a(f"s_cmp_eq_u32 {sr(S_WAVE)}, 8")
    a("s_cbranch_scc1 L_control")
    a.label("L_dma")

    a(f"s_sub_u32 {sr(S_LW)}, {sr(S_WAVE)}, 4")
    a("v_mul_u32_u24 v8, 43, v0")
    a("v_lshrrev_b32 v8, 8, v8")
    a("v_mul_u32_u24 v7, 6, v8")
    a("v_sub_u32 v7, v0, v7")
    a("v_cmp_gt_u32 vcc, 4, v7")
    a(f"s_lshl_b32 {sr(S_T2)}, {sr(S_C0)}, 1")
    a(f"v_lshl_add_u32 v7, v7, 4, {sr(S_T2)}")
    a(f"s_lshl_b32 {sr(S_T2)}, {sr(S_CR)}, 1")
    a(f"v_mov_b32 v6, {sr(S_T2)}")
    a("v_cndmask_b32 v7, v6, v7, vcc")
    a("v_mul_u32_u24 v8, 576, v8")
    a("v_add_u32 v20, v7, v8")
    a("v_lshrrev_b32 v6, 2, v0")
    a("v_mul_u32_u24 v6, 576, v6")
    a("v_and_b32 v7, 3, v0")
    a("v_lshrrev_b32 v8, 4, v0")
    a("v_and_b32 v8, 2, v8")
    a("v_xor_b32 v8, v8, v7")
    a("v_lshl_add_u32 v31, v8, 4, v6")
    a(f"s_lshl_b32 {sr(S_T2)}, {sr(S_NS)}, 6")
    a(f"v_add_u32 v31, {sr(S_T2)}, v31")
    a(f"s_mul_i32 {sr(S_T2)}, {sr(S_C0)}, 576")
    a(f"v_add_u32 v30, {sr(S_T2)}, v31")
    a("v_lshrrev_b32 v6, 5, v0")
    a(f"v_mul_u32_u24 v6, {82944 - 8*576}, v6")
    a("v_add_u32 v31, v31, v6")
    a(f"s_mul_i32 {sr(S_B1)}, {sr(S_JB)}, 9")
    a(f"s_lshr_b32 {sr(S_B1)}, {sr(S_B1)}, 3")
    a(f"s_add_u32 {sr(S_B1)}, {sr(S_B1)}, 4")
    a(f"s_lshr_b32 {sr(S_WOF)}, {sr(S_LW)}, 1")
    a(f"s_mul_i32 {sr(S_WOF)}, {sr(S_WOF)}, 82944")
    a(f"s_and_b32 {sr(S_T2)}, {sr(S_LW)}, 1")
    a(f"s_mul_i32 {sr(S_T2)}, {sr(S_T2)}, 9216")
    a(f"s_add_u32 {sr(S_WOF)}, {sr(S_WOF)}, {sr(S_T2)}")
    a(f"s_lshl_b32 {sr(S_LD)}, {sr(S_LW)}, 10")
    a(f"s_lshr_b32 {sr(S_XO)}, {sr(S_T0)}, 1")
    a(f"s_mul_i32 {sr(S_XO)}, {sr(S_XO)}, 288000")
    a(f"s_and_b32 {sr(S_T2)}, {sr(S_T0)}, 1")
    a(f"s_mul_i32 {sr(S_T2)}, {sr(S_T2)}, 288")
    a(f"s_add_u32 {sr(S_XO)}, {sr(S_XO)}, {sr(S_T2)}")
    a(f"s_mul_i32 {sr(S_T1)}, {sr(S_T1)}, {9*576}")
    a(f"s_add_u32 {sr(S_XO)}, {sr(S_XO)}, {sr(S_T1)}")
    a(f"s_sub_u32 {sr(S_XO)}, {sr(S_XO)}, {32*576}")
    a(f"s_add_u32 {sr(S_T0)}, {sr(S_T0)}, 1")
    a(f"s_lshr_b32 {sr(S_DEL)}, {sr(S_T0)}, 1")
    a(f"s_mul_i32 {sr(S_DEL)}, {sr(S_DEL)}, 288000")
    a(f"s_and_b32 {sr(S_T2)}, {sr(S_T0)}, 1")
    a(f"s_mul_i32 {sr(S_T2)}, {sr(S_T2)}, 288")
    a(f"s_add_u32 {sr(S_DEL)}, {sr(S_DEL)}, {sr(S_T2)}")
    a(f"s_add_u32 {sr(S_T2)}, {sr(S_B1)}, 4")
    a(f"s_mul_i32 {sr(S_T2)}, {sr(S_T2)}, 4608")
    a(f"s_sub_u32 {sr(S_DEL)}, {sr(S_DEL)}, {sr(S_T2)}")
    a(f"s_sub_u32 {sr(S_DEL)}, {sr(S_DEL)}, {sr(S_XO)}")
    a(f"s_bitcmp1_b32 {sr(S_M)}, 0")
    a(f"s_cselect_b32 {sr(S_DEL)}, {sr(S_DEL)}, {sr(S_OOB)}")
    a(f"s_cselect_b32 {sr(S_E)}, 44, 40")
    a(f"s_cmp_eq_u32 {sr(S_M)}, 0")
    a(f"s_cselect_b32 {sr(S_DEL)}, 0, {sr(S_DEL)}")
    a(f"s_cselect_b32 {sr(S_B1)}, 0, {sr(S_B1)}")

    def xblock_off(dst, dm0, add):
        if add:
            a(f"s_add_u32 {sr(S_T3)}, {sr(S_T3)}, 4")
            a(f"s_sub_u32 {sr(S_T1)}, {sr(S_T3)}, 44")
            a(f"s_cselect_b32 {sr(S_T3)}, {sr(S_T3)}, {sr(S_T1)}")
        a(f"s_mul_i32 {sr(dm0)}, {sr(S_T3)}, 768")
        a(f"s_mul_i32 {sr(dst)}, {sr(S_T3)}, 4608")
        a(f"s_add_u32 {sr(dst)}, {sr(dst)}, {sr(S_XO)}")
        a(f"s_add_u32 {sr(S_T1)}, {sr(dst)}, {sr(S_DEL)}")
        a(f"s_cmp_lt_u32 {sr(S_T3)}, {sr(S_B1)}")
        a(f"s_cselect_b32 {sr(dst)}, {sr(dst)}, {sr(S_T1)}")
        a(f"s_sub_u32 {sr(S_T1)}, {sr(S_T3)}, {sr(S_B1)}")
        a(f"s_cmp_lt_u32 {sr(S_T1)}, 4")
        a(f"s_cselect_b32 {sr(dst)}, {sr(S_OOB)}, {sr(dst)}")
        a(f"s_cmp_lt_u32 {sr(S_T3)}, {sr(S_E)}")
        a(f"s_cselect_b32 {sr(dst)}, {sr(dst)}, {sr(S_OOB)}")

    if opt.get("rot", True):
        a(f"s_mul_i32 {sr(S_T3)}, {sr(S_NS)}, 9")
        a(f"s_lshr_b32 {sr(S_T3)}, {sr(S_T3)}, 1")
        a(f"s_add_u32 {sr(S_T3)}, {sr(S_T3)}, {sr(S_LW)}")
    else:
        a(f"s_mov_b32 {sr(S_T3)}, {sr(S_LW)}")
    xblock_off(S_XB, S_XB + 1, 0)
    a(f"s_lshl_b32 {sr(S_T1)}, {sr(S_SIDE)}, 3")
    a(f"s_add_u32 {sr(S_T1)}, {sr(S_T1)}, {sr(S_LW)}")
    a(f"s_mul_i32 {sr(S_T1)}, {sr(S_T1)}, {2*82944}")
    a(f"s_mul_i32 {sr(S_T2)}, {sr(S_CR)}, 576")
    a(f"s_add_u32 {sr(S_XB+2)}, {sr(S_T1)}, {sr(S_T2)}")
    if PF:
        a(f"s_lshr_b32 {sr(S_T0)}, s2, 3")
        a(f"s_lshl_b32 {sr(S_T0)}, {sr(S_T0)}, 2")
        a(f"s_add_u32 {sr(S_T0)}, {sr(S_T0)}, {sr(S_LW)}")
        a(f"s_lshr_b32 {sr(S_T1)}, {sr(S_T0)}, 4")
        a(f"s_mul_i32 {sr(S_T1)}, {sr(S_T1)}, {82944 - 16*9*128}")
        a(f"s_mul_i32 {sr(S_T2)}, {sr(S_T0)}, {9*128}")
        a(f"s_add_u32 {sr(S_T1)}, {sr(S_T1)}, {sr(S_T2)}")
        a(f"s_mul_i32 {sr(S_T2)}, {sr(S_C0)}, 576")
        a(f"s_add_u32 {sr(S_T1)}, {sr(S_T1)}, {sr(S_T2)}")
        a(f"s_add_u32 {sr(S_XB+3)}, {sr(S_T1)}, {2*82944}")
        a("v_min_u32 v22, 8, v0")
        a("v_lshlrev_b32 v22, 7, v22")
    a("s_waitcnt lgkmcnt(0)")
    srd(S_X, 4)
    srd(S_W, 6)
    stamp(1)

    def issue_op(tag):
        kind, n = tag
        if kind == "w":
            a(f"s_add_u32 m0, {sr(S_LD)}, {WOFF + 4096*n}")
            if n:
                a(f"s_add_u32 {sr(S_WOF)}, {sr(S_WOF)}, {2*82944}")
            else:
                a("s_nop 0")
            a(f"buffer_load_dwordx4 v30, {sr(S_W,4)}, {sr(S_WOF)} offen lds")
        elif kind == "xm":
            if n:
                xblock_off(S_XB, S_XB + 1, 4 * n)
            a(f"s_mov_b32 m0, {sr(S_XB+1)}")
            a("s_mov_b32 exec_hi, 0xffff")
            a(f"buffer_load_dwordx4 v20, {sr(S_X,4)}, {sr(S_XB)} offen lds")
            a("s_mov_b32 exec_hi, -1")
        elif kind == "wr":
            a(f"s_add_u32 m0, {sr(S_LD)}, {WROFF + 4096*n}")
            if n:
                a(f"s_add_u32 {sr(S_XB+2)}, {sr(S_XB+2)}, {8*82944}")
            else:
                a("s_nop 0")
            a(f"buffer_load_dwordx4 v31, {sr(S_W,4)}, {sr(S_XB+2)} offen lds")
        elif kind == "pf":
            a(f"buffer_load_dword v{V_DUMMY - n}, v{21 + n}, {sr(S_W,4)}, {sr(S_XB + 2 + n)} offen")
        elif kind == "wo":
            a(f"s_add_u32 m0, {sr(S_LD)}, {WOOFF + 4096*n}")
            a(f"s_mov_b32 {sr(S_T1)}, {4096*n}")
            a(f"buffer_load_dwordx4 v32, {sr(S_WO,4)}, {sr(S_T1)} offen lds")

    issued = []
    landed = 0

    def wait_upto(depth):
        nonlocal landed
        while len(issued) - landed > depth:
            tag = issued[landed]
            landed += 1
            last = len(issued) - landed <= depth
            if tag in stage_ends or last:
                a(f"s_waitcnt vmcnt({len(issued) - landed})")
            if tag in stage_ends:
                s = stage_ends.index(tag)
                if s == 0:
                    a("s_waitcnt lgkmcnt(0)")
                    a("s_barrier")
                    stamp(3)
                else:
                    a(f"v_mov_b32 v41, {s}")
                    a("ds_write_b32 v40, v41")
                    if s - 1 < 7:
                        xstamp(s - 1)

    for i, tag in enumerate(ops):
        if i > ops.index(("xm", 10)):
            wait_upto((DEPTH if tag[0] != "wo" or landed <= issued.index(("w", 15)) else 2 * DEPTH) - 1)
        issue_op(tag)
        issued.append(tag)
        if tag == ("xm", 10):
            srd(S_WS, 14)
            srd(S_OUT, 10)
            a(f"s_lshl_b32 {sr(S_T0)}, {sr(S_LW)}, 2")
            a(f"s_add_u32 {sr(S_T0)}, {sr(S_T0)}, {PROG}")
            a(f"v_mov_b32 v40, {sr(S_T0)}")
            a("v_mov_b32 v41, 0")
            a("ds_write_b32 v40, v41")
            srd(S_WO, 8)
            a("v_lshlrev_b32 v32, 4, v0")
            a(f"v_add_u32 v32, {sr(S_LD)}, v32")
            if PF:
                a(f"s_lshr_b32 {sr(S_T0)}, s2, 3")
                a(f"s_lshl_b32 {sr(S_T0)}, {sr(S_T0)}, 2")
                a(f"s_add_u32 {sr(S_T0)}, {sr(S_T0)}, {sr(S_LW)}")
                a(f"s_mul_i32 {sr(S_T1)}, {sr(S_T0)}, 43")
                a(f"s_lshr_b32 {sr(S_T1)}, {sr(S_T1)}, 8")
                a(f"s_mul_i32 {sr(S_T1)}, {sr(S_T1)}, {82944 - 6*24*128}")
                a(f"s_mul_i32 {sr(S_T2)}, {sr(S_T0)}, {24*128}")
                a(f"s_add_u32 {sr(S_T1)}, {sr(S_T1)}, {sr(S_T2)}")
                a(f"s_mul_i32 {sr(S_T2)}, {sr(S_C0)}, 576")
                a(f"s_add_u32 {sr(S_T1)}, {sr(S_T1)}, {sr(S_T2)}")
                a(f"s_add_u32 {sr(S_XB+4)}, {sr(S_T1)}, {10*82944}")
                a("v_min_u32 v23, 23, v0")
                a("v_lshlrev_b32 v23, 7, v23")
            stamp(2)
    stamp(4)
    p2_prep_gate()
    p2_prep_proj()
    wait_upto(0)
    if opt.get("pads", True):
        a("s_mov_b64 exec, 0")
        for k in range(1, 4):
            a(f"s_cmp_eq_u32 {sr(S_LW)}, {k}")
            a(f"s_cbranch_scc1 L_pad{2*k}")
        a("s_branch L_pad0")
        a.label("L_warm_done")
        a("s_mov_b64 exec, -1")
    xstamp(9)
    a("s_branch L_help")

    a.label("L_control")
    a(f"s_lshr_b32 {sr(S_LW)}, s2, 3")
    a(f"v_mov_b32 v40, {PROG + 16}")
    a("v_mov_b32 v41, 0")
    a("ds_write_b32 v40, v41")
    a("ds_write_b32 v40, v41 offset:4")
    a("v_min_u32 v22, 35, v0")
    a("v_lshlrev_b32 v22, 7, v22")
    a("v_lshlrev_b32 v32, 4, v0")
    a("v_mov_b32 v42, 0")
    a(f"v_mov_b32 v5, {OOB:#x}")
    a("v_cmp_eq_u32 vcc, 0, v0")
    a(f"s_memrealtime {sr(S_T0,2)}")
    a("s_waitcnt lgkmcnt(0)")
    a("v_cndmask_b32 v38, v5, v42, vcc")
    srd(S_DBG, 12)
    srd(S_W, 6)
    srd(S_WO, 8)
    srd(S_WS, 14)
    srd(S_OUT, 10)
    a("s_cmp_lg_u32 s2, 0")
    a("s_cbranch_scc1 L_no_nonce")
    a(f"s_or_b32 {sr(S_T0)}, {sr(S_T0)}, 1")
    a(f"v_mov_b32 v1, {sr(S_T0)}")
    a(f"buffer_store_dword v1, v38, {sr(S_DBG,4)}, 0 offen sc1")
    a.label("L_no_nonce")
    stamp(1)
    p2_prep_gate()
    p2_prep_proj()
    stamp(2)
    a("s_waitcnt lgkmcnt(0)")
    a("s_barrier")
    stamp(3)
    a(f"s_sleep {opt.get('nonce_sleep', 16)}")
    a(f"s_mov_b32 {sr(S_SPIN)}, 0")
    if PF:
        a(f"s_mul_i32 {sr(S_T1)}, {sr(S_LW)}, {11*128}")
        a("v_min_u32 v2, 1280, v22")
        a(f"buffer_load_dword v{V_DUMMY}, v2, {sr(S_WO,4)}, {sr(S_T1)} offen")
    a.label("L_nonce")
    a(f"buffer_load_dword v43, v42, {sr(S_DBG,4)}, 0 offen sc1")
    a(f"s_add_u32 {sr(S_SPIN)}, {sr(S_SPIN)}, 1")
    a(f"s_cmp_lt_u32 {sr(S_SPIN)}, {SPINMAX}")
    a(f"s_cselect_b32 {sr(S_T1)}, 0, 1")
    a("s_waitcnt vmcnt(0)")
    a(f"v_or_b32 v43, {sr(S_T1)}, v43")
    a("v_cmp_eq_u32 vcc, 0, v43")
    a("s_cbranch_vccnz L_nonce")
    a("ds_write_b32 v40, v43")
    xstamp(3)
    a("s_waitcnt lgkmcnt(0)")
    stamp(4)
    a("s_branch L_help")

    a.label("L_compute")
    V_XR, V_WB, V_WR, V_SA, V_SB, V_FA = 3, 4, 5, 6, 7, 2
    a("v_and_b32 v8, 15, v0")
    a("v_lshrrev_b32 v9, 4, v0")
    a(f"s_lshr_b32 {sr(S_T0)}, {sr(S_WAVE)}, 1")
    a(f"s_and_b32 {sr(S_T1)}, {sr(S_WAVE)}, 1")
    a(f"s_lshl_b32 {sr(S_T2)}, {sr(S_T0)}, 4")
    a(f"v_add_u32 v10, {sr(S_T2)}, v8")
    a(f"v_cmp_le_u32 vcc, {sr(S_JB)}, v10")
    a("v_mul_u32_u24 v11, 9, v10")
    a("v_add_u32 v11, 2, v11")
    a("v_add_u32 v1, 32, v11")
    a("v_cndmask_b32 v11, v11, v1, vcc")
    a("v_mul_u32_u24 v1, 96, v11")
    a(f"v_lshl_add_u32 v{V_XB}, v9, 4, v1")
    a(f"s_mul_i32 {sr(S_T2)}, {sr(S_SIDE)}, {16*96}")
    a(f"s_sub_u32 {sr(S_T2)}, {18*96 + 64}, {sr(S_T2)}")
    a(f"v_add_u32 v1, {sr(S_T2)}, v1")
    a("v_mul_u32_u24 v10, 96, v9")
    a("v_sub_u32 v1, v1, v10")
    a("v_and_b32 v10, 1, v9")
    a(f"v_lshl_add_u32 v{V_XR}, v10, 4, v1")
    a("v_and_b32 v10, 1, v9")
    a("v_lshlrev_b32 v1, 1, v10")
    a("v_bfe_u32 v10, v0, 2, 2")
    a("v_lshl_add_u32 v10, v9, 3, v10")
    a(f"v_lshlrev_b32 v{V_WB}, 6, v10")
    a("v_bfe_u32 v10, v0, 1, 1")
    a(f"s_lshl_b32 {sr(S_T2)}, {sr(S_T1)}, 1")
    a(f"v_add_u32 v10, {sr(S_T2)}, v10")
    a("v_xor_b32 v10, v10, v1")
    a(f"v_lshl_add_u32 v{V_WB}, v10, 4, v{V_WB}")
    a("v_and_b32 v10, 1, v0")
    a(f"v_lshl_add_u32 v{V_WB}, v10, 3, v{V_WB}")
    a(f"v_add_u32 v{V_WB}, {WOFF}, v{V_WB}")
    a(f"v_add_u32 v{V_WR}, {WROFF - WOFF}, v{V_WB}")
    a("v_and_b32 v10, 3, v0")
    a("v_lshlrev_b32 v10, 2, v10")
    a(f"v_add_u32 v{V_FA}, {PROG}, v10")
    a(f"s_mul_i32 {sr(S_T2)}, {sr(S_Q)}, 4608")
    a(f"s_lshl_b32 {sr(S_T3)}, {sr(S_NS)}, 9")
    a(f"s_add_u32 {sr(S_T2)}, {sr(S_T2)}, {sr(S_T3)}")
    a(f"s_lshl_b32 {sr(S_T3)}, {sr(S_T1)}, 8")
    a(f"s_add_u32 {sr(S_T2)}, {sr(S_T2)}, {sr(S_T3)}")
    a(f"s_mul_i32 {sr(S_T3)}, {sr(S_M)}, {36*INBOX}")
    a(f"s_add_u32 {sr(S_T2)}, {sr(S_T2)}, {sr(S_T3)}")
    a("v_lshlrev_b32 v10, 6, v9")
    a(f"v_add_u32 v10, {sr(S_T2)}, v10")
    a(f"s_mul_i32 {sr(S_T3)}, {sr(S_T0)}, {16*INBOX}")
    a("v_lshrrev_b32 v1, 2, v8")
    a(f"v_mul_u32_u24 v1, {INBOX}, v1")
    a(f"v_add3_u32 v{V_SA}, v10, v1, {sr(S_T3)}")
    a("v_and_b32 v1, 3, v8")
    a(f"v_lshl_add_u32 v{V_SA}, v1, 4, v{V_SA}")
    a(f"s_mul_i32 {sr(S_T3)}, {sr(S_T0)}, {2*INBOX}")
    a(f"s_add_u32 {sr(S_T3)}, {sr(S_T3)}, {32*INBOX}")
    a("v_lshrrev_b32 v1, 3, v8")
    a(f"v_mul_u32_u24 v1, {INBOX}, v1")
    a(f"v_add3_u32 v{V_SB}, v10, v1, {sr(S_T3)}")
    a("v_and_b32 v1, 7, v8")
    a(f"v_lshl_add_u32 v{V_SB}, v1, 3, v{V_SB}")
    V_SC, V_SD, V_NON, V_ONE, V_CNT = 140, 141, 131, 142, 143
    a(f"s_mul_i32 {sr(S_T2)}, {sr(S_Q)}, 1152")
    a(f"s_lshl_b32 {sr(S_T3)}, {sr(S_NS)}, 7")
    a(f"s_add_u32 {sr(S_T2)}, {sr(S_T2)}, {sr(S_T3)}")
    a(f"s_lshl_b32 {sr(S_T3)}, {sr(S_T1)}, 6")
    a(f"s_add_u32 {sr(S_T2)}, {sr(S_T2)}, {sr(S_T3)}")
    a(f"s_mul_i32 {sr(S_T3)}, {sr(S_M)}, {36*INBOX}")
    a(f"s_add_u32 {sr(S_T2)}, {sr(S_T2)}, {sr(S_T3)}")
    a(f"s_add_u32 {sr(S_T2)}, {sr(S_T2)}, {SUMS}")
    a(f"s_mul_i32 {sr(S_T3)}, {sr(S_T0)}, {16*INBOX}")
    a(f"s_add_u32 {sr(S_T3)}, {sr(S_T3)}, {sr(S_T2)}")
    a("v_lshrrev_b32 v1, 2, v8")
    a(f"v_mul_u32_u24 v1, {INBOX}, v1")
    a("v_and_b32 v10, 3, v8")
    a("v_lshl_add_u32 v1, v10, 4, v1")
    a(f"v_add_u32 v{V_SC}, {sr(S_T3)}, v1")
    a(f"s_mul_i32 {sr(S_T3)}, {sr(S_T0)}, {2*INBOX}")
    a(f"s_add_u32 {sr(S_T3)}, {sr(S_T3)}, {32*INBOX}")
    a(f"s_add_u32 {sr(S_T3)}, {sr(S_T3)}, {sr(S_T2)}")
    a("v_lshrrev_b32 v1, 3, v8")
    a(f"v_mul_u32_u24 v1, {INBOX}, v1")
    a("v_bfe_u32 v10, v8, 1, 2")
    a("v_lshl_add_u32 v1, v10, 4, v1")
    a(f"v_add_u32 v{V_SD}, {sr(S_T3)}, v1")
    a("v_cmp_gt_u32 vcc, 16, v0")
    a("v_and_b32 v10, 0x31, v0")
    a(f"v_cmp_eq_u32 {sr(S_M0A,2)}, 0, v10")
    a(f"v_mov_b32 v1, {OOB:#x}")
    a(f"v_cndmask_b32 v{V_SC}, v1, v{V_SC}, vcc")
    a(f"v_cndmask_b32 v{V_SD}, v1, v{V_SD}, {sr(S_M0A,2)}")
    a("v_cmp_eq_u32 vcc, 0, v0")
    a(f"v_lshlrev_b32 v{V_CNT}, 2, v0")
    a(f"v_add_u32 v{V_CNT}, {PROG + 20}, v{V_CNT}")
    a(f"v_mov_b32 v{V_PA}, v1")
    a(f"v_mov_b32 v{V_PC}, v1")
    a(f"v_mov_b32 v{V_FA2}, {PROG + 16}")
    a(f"v_cndmask_b32 v{V_ONE}, 0, 1, vcc")
    for ap in range(1, 4):
        a(f"s_mov_b32 {sr(S_LD+ap-1)}, {ap*4*INBOX}")
    p2_prep_proj()
    a("s_waitcnt lgkmcnt(0)")
    srd(S_WS, 14)
    srd(S_OUT, 10)
    stamp(1)
    if diag:
        a("s_waitcnt lgkmcnt(0)")
    if opt.get("prio", True):
        a("s_setprio 2")

    mf = []
    for p in range(4):
        for aa in range(8, -1, -1):
            mf.append((aa, ("WR", p), ("XR", aa - 4 * p)))
    for i in range(T0):
        for aa in range(8, -1, -1):
            mf.append((aa, ("W", i), ("X", aa - i)))
    for aa in range(8, -1, -1):
        for i in range(T0, 31):
            mf.append((aa, ("W", i), ("X", aa - i)))
    first_use, last_use, acc_last = {}, {}, {}
    for idx, (aa, wk, xk) in enumerate(mf):
        for k in (wk, xk):
            first_use.setdefault(k, idx)
            last_use[k] = idx
        acc_last[aa] = idx

    def stage_of(k):
        if k[0] == "W":
            return stage_of_tag(("w", k[1] // 2))
        if k[0] == "WR":
            return stage_of_tag(("wr", 1))
        return 0

    order = sorted(first_use, key=lambda k: (first_use[k], k[0][0] != "W"))
    free = list(range(V_POOL0, V_POOL1, 4))
    reg = {}
    pend = list(order)
    outstanding = []
    stage_ok = -1
    flag_inflight = None
    need_at = {0: 0}
    for k in order:
        st = stage_of(k)
        if st > 0 and st not in need_at:
            lc = LEADC if k[0] != "W" or k[1] < T0 else opt.get("leadt", 18)
            need_at[st] = first_use[k] - lc
    need_at[FINAL] = acc_last[8] + 4

    def wait_for(keys):
        need = max([i for i, k in enumerate(outstanding) if k in keys], default=-1)
        if need >= 0:
            a(f"s_waitcnt lgkmcnt({len(outstanding) - need - 1})")
            del outstanding[:need + 1]

    def flag_read(s):
        nonlocal flag_inflight
        a(f"ds_read_b32 v{V_F}, v{V_FA2 if s == FINAL else V_FA}")
        outstanding.append(("F", s))
        flag_inflight = s

    def do_check(s):
        nonlocal stage_ok, flag_inflight
        if s == 0:
            a("s_barrier")
            stamp(2)
            if diag:
                a("s_waitcnt lgkmcnt(0)")
        else:
            if flag_inflight != s:
                flag_read(s)
            a.label(f"L_chk{s}")
            a("s_waitcnt lgkmcnt(0)")
            del outstanding[:]
            if s == FINAL:
                a(f"v_cmp_eq_u32 vcc, 0, v{V_F}")
                a(f"v_mov_b32 v{V_NON}, v{V_F}")
            else:
                a(f"v_cmp_gt_u32 vcc, {s}, v{V_F}")
            a(f"ds_read_b32 v{V_F}, v{V_FA2 if s == FINAL else V_FA}")
            outstanding.append(("F", -1))
            a(f"s_cbranch_vccnz L_chk{s}")
            if diag and opt.get("cstamp", False):
                xstamp(s - 1)
                a("s_waitcnt lgkmcnt(0)")
                del outstanding[:]
            flag_inflight = None
        stage_ok = s

    def issue(k):
        r = free.pop(0)
        reg[k] = r
        if k[0] in ("W", "WR"):
            b = V_WB if k[0] == "W" else V_WR
            a(f"ds_read_b64_tr_b16 {vr(r,2)}, v{b} offset:{k[1]*2048}")
            a(f"ds_read_b64_tr_b16 {vr(r+2,2)}, v{b} offset:{k[1]*2048+256}")
            outstanding.extend([k, k])
        elif k[0] in ("X", "X2"):
            a(f"ds_read_b128 {vr(r,4)}, v{V_XB} offset:{(k[1] + 30) * 96}")
            outstanding.append(k)
        else:
            a(f"ds_read_b128 {vr(r,4)}, v{V_XR} offset:{(k[1]+12)*96}")
            outstanding.append(k)

    done_at = {}
    post = []

    def tmp_of(aa):
        return V_CV if ((aa >> 1) & 1) == 0 else V_CV2

    def cvt(aa, half):
        t = tmp_of(aa) + (2 * (aa & 1) if aa < 8 else 0) + half
        b = V_ACC + 4 * aa + 2 * half
        a(f"v_cvt_pk_bf16_f32 v{t}, v{b}, v{b+1}")

    def store(aa):
        tmp = tmp_of(aa)
        if aa == 8:
            a(f"buffer_store_dwordx2 {vr(tmp,2)}, v{V_SB}, {sr(S_WS,4)}, 0 offen sc1")
        else:
            ap = aa >> 1
            so = "0" if ap == 0 else sr(S_LD + ap - 1)
            a(f"buffer_store_dwordx4 {vr(tmp,4)}, v{V_SA}, {sr(S_WS,4)}, {so} offen sc1")

    GAP = object()

    def ckreg(aa):
        return V_T + 4 * ((aa >> 1) & 1)

    def count():
        a(f"ds_add_u32 v{V_CNT}, v{V_ONE}")
        outstanding.append(("C", 0))

    def ck_ops(aa):
        tmp = tmp_of(aa)
        c = ckreg(aa)
        if aa == 8:
            l = [lambda: a(f"v_add_u32 v{c+1}, v{tmp}, v{tmp+1}"), GAP,
                 lambda: a(f"v_add_u32_dpp v{c}, v{c+1}, v{c+1} quad_perm:[1,0,3,2] row_mask:0xf bank_mask:0xf"),
                 lambda: a(f"v_add_u32 v{c}, v{c}, v{V_NON}")]
            adr, so = V_SD, "0"
        else:
            l = [lambda: a(f"v_add3_u32 v{c}, v{c}, v{tmp}, v{tmp+1}")]
            ap = aa >> 1
            adr, so = V_SC, ("0" if ap == 0 else sr(S_LD + ap - 1))
        l += [lambda: a(f"v_mov_b32 v{c+1}, v{c}"), GAP,
              lambda: a(f"v_permlane16_swap_b32 v{c}, v{c+1}"),
              lambda: (a(f"v_mov_b32 v{c+2}, v{c}"), a(f"v_mov_b32 v{c+3}, v{c+1}")), GAP,
              lambda: (a(f"v_permlane32_swap_b32 v{c}, v{c+2}"), a(f"v_permlane32_swap_b32 v{c+1}, v{c+3}")),
              lambda: a(f"buffer_store_dwordx4 {vr(c,4)}, v{adr}, {sr(S_WS,4)}, {so} offen sc1"),
              count]
        return l

    finished = set()

    def acc_done(aa):
        done_at[aa] = a.n
        post.append((aa, lambda: cvt(aa, 0)))
        post.append((aa, lambda: cvt(aa, 1)))
        finished.add(aa)
        if aa == 8 or (aa ^ 1) in finished:
            post.append((aa, lambda: store(aa)))
            for f in ck_ops(aa):
                post.append((aa, f))
        else:
            tmp = tmp_of(aa)
            post.append((aa, lambda: a(f"v_add3_u32 v{ckreg(aa)}, v{tmp+2}, v{tmp+3}, v{V_NON}")))

    LEADT = opt.get("leadt", 18)
    seen_acc = set()
    for idx, (aa, wk, xk) in enumerate(mf):
        nxt = [s for s in need_at if s > stage_ok]
        if nxt:
            s = min(nxt)
            if s > 0 and flag_inflight is None and need_at[s] - LEADF <= idx:
                flag_read(s)
            if need_at[s] <= idx:
                do_check(s)
        n_iss = 0
        while True:
            cand = [k for k in pend[:4] if stage_of(k) <= stage_ok]
            if not cand or not free or len(outstanding) > 12:
                break
            k = cand[0]
            lead = LEADT if first_use[k] >= T0 * 9 + 36 - 4 else LEAD
            if first_use[k] > idx + lead:
                break
            if flag_inflight is not None and first_use[k] > idx + LEADC + LEADF - 3 and 45 < first_use[k] < T0 * 9 + 30:
                break
            if not (n_iss < 1 or first_use[k] <= idx + 2 or idx == 0):
                break
            pend.remove(k)
            issue(k)
            n_iss += 1
        assert wk in reg and xk in reg, (idx, wk, xk, len(free))
        if post and a.n - done_at[post[0][0]] >= 8:
            f = post.pop(0)[1]
            if f is not GAP:
                f()
        wait_for([wk, xk])
        acc = V_ACC + 4 * aa
        a(f"v_mfma_f32_16x16x32_bf16 {vr(acc,4)}, {vr(reg[wk],4)}, {vr(reg[xk],4)}, {vr(acc,4) if aa in seen_acc else '0'}")
        seen_acc.add(aa)
        for k in (wk, xk):
            if last_use[k] == idx:
                free.append(reg[k])
        if acc_last[aa] == idx:
            acc_done(aa)
    assert not pend
    stamp(3)
    while post:
        gap = 8 - (a.n - done_at[post[0][0]])
        if gap > 0:
            a(f"s_nop {gap - 1}")
            a.n += gap
        f = post.pop(0)[1]
        if f is GAP:
            a("s_nop 1")
        else:
            f()
    stamp(4)
    a("s_setprio 0")
    a(f"ds_read_b32 v{V_F}, v{V_FA}")
    a.label("L_chkwo")
    a("s_waitcnt lgkmcnt(0)")
    a(f"v_cmp_gt_u32 vcc, {WOST}, v{V_F}")
    a(f"ds_read_b32 v{V_F}, v{V_FA}")
    a("s_cbranch_vccnz L_chkwo")
    wo_frags()
    a("s_branch L_p2")
    phase2()
    diag_dump()
    a.label("L_done")
    a("s_endpgm")
    a.label("L_end")

    ldf, stf = opt.get("ldf", "sc1"), opt.get("stf", "sc1")
    for i, ln in enumerate(a.lines):
        if ln.endswith(" sc1") and sr(S_WS, 4) in ln:
            a.lines[i] = ln[:-3] + (ldf if "load" in ln else stf)
    head = open("cdna_kernels/" + NAME + ".s.ref").read().split("; Override")[0]
    head += f"; @launch grid=({NWG},1,1) block=(576,1,1) lds={LDS_BYTES}\n"
    head += '.amdgcn_target "amdgcn-amd-amdhsa--gfx950"\n.text\n'
    tail = f""".section .rodata,"a"
.p2align 6
.amdhsa_kernel {K1}
  .amdhsa_next_free_vgpr {NVGPR}
  .amdhsa_next_free_sgpr 102
  .amdhsa_accum_offset {NVGPR}
  .amdhsa_group_segment_fixed_size 0
  .amdhsa_kernarg_size 48
  .amdhsa_user_sgpr_count 2
  .amdhsa_user_sgpr_kernarg_segment_ptr 1
  .amdhsa_system_sgpr_workgroup_id_x 1
.end_amdhsa_kernel
"""
    return head + a.text() + tail


if __name__ == "__main__":
    out = sys.argv[1]
    opt = {}
    for kv in sys.argv[2:]:
        k, v = kv.split("=", 1)
        opt[k] = eval(v)
    open(out, "w").write(gen(opt))
```
